```python
import torch

def _softmax(x, axis=-1):
    return torch.softmax(x, dim=axis)
def _gelu(x):
    return torch.nn.functional.gelu(x, approximate="tanh")
def _silu(x):
    return torch.nn.functional.silu(x)
def _sigmoid(x):
    return torch.sigmoid(x)
def _layernorm(x, axis=-1, eps=1e-5):
    m = x.mean(dim=axis, keepdim=True)
    v = x.var(dim=axis, keepdim=True, unbiased=False)
    return (x - m) / torch.sqrt(v + eps)
def _scatter_add(tgt, idx, src, axis=0):
    return tgt.clone().index_add_(axis, idx, src)
def _segment_sum(src, seg, n):
    out = torch.zeros((n,) + src.shape[1:], dtype=src.dtype)
    return out.index_add_(0, seg, src)
def _pad(x, pw):
    flat = tuple(v for pair in reversed(pw) for v in pair)
    return torch.nn.functional.pad(x, flat)

kernel_name = 'standalone__kv_cache_quant_int4_int2_kv_with_per_channel_or_per_token_scales__decode'

def setup_inputs():

    _w = (lambda a: (lambda t: t.to(torch.bfloat16) if t.is_floating_point() else t)(torch.as_tensor(a)))
    B = 4
    Sq = 1
    Skv = 8192
    Hq = 32
    Hkv = 8
    Dh = 128
    bits = 2
    G = 64
    if G <= 0 or G >= Skv:
        G = max(1, Skv // 2)
    Skv = (Skv // G) * G
    ngk = Skv // G
    qmax = (1 << bits) - 1
    return {
        "q": _w((lambda *s: torch.randn(*s, dtype=torch.bfloat16) * 3.2)(B, Hq, Sq, Dh)),
        "qk": _w(torch.randint(0, qmax + 1, (B, Hkv, Skv, Dh)).to(torch.int32)),
        "qv": _w(torch.randint(0, qmax + 1, (B, Hkv, Skv, Dh)).to(torch.int32)),
        "k_scales": _w(torch.abs((lambda *s: torch.randn(*s, dtype=torch.bfloat16) * 3.2)(B, Hkv, ngk, Dh)) * 0.05 + 0.02),
        "k_zeros": _w((lambda *s: torch.randn(*s, dtype=torch.bfloat16) * 3.2)(B, Hkv, ngk, Dh) + float(qmax) / 2.0),
        "v_scales": _w(torch.abs((lambda *s: torch.randn(*s, dtype=torch.bfloat16) * 0.05)(B, Hkv, Skv, 1)) * 0.05 + 0.02),
        "v_zeros": _w((lambda *s: torch.randn(*s, dtype=torch.bfloat16) * 0.05)(B, Hkv, Skv, 1) + float(qmax) / 2.0),
    }

def reference(q, qk, qv, k_scales, k_zeros, v_scales, v_zeros):
    B, Hq, Sq, Dh = q.shape
    Hkv, Skv = qk.shape[1], qk.shape[2]
    ngk = k_scales.shape[2]
    G = Skv // ngk
    ks = (lambda x, n, axis: torch.repeat_interleave(x, n, dim=axis))(k_scales, G, axis=2)
    kz = (lambda x, n, axis: torch.repeat_interleave(x, n, dim=axis))(k_zeros, G, axis=2)
    k = ((lambda x, dt: x.to(dt))(qk, q.dtype) - kz) * ks
    v = ((lambda x, dt: x.to(dt))(qv, q.dtype) - v_zeros) * v_scales
    rep = Hq // Hkv
    if rep > 1:
        k = (lambda x, n, axis: torch.repeat_interleave(x, n, dim=axis))(k, rep, axis=1)
        v = (lambda x, n, axis: torch.repeat_interleave(x, n, dim=axis))(v, rep, axis=1)
    scale = float(Dh) ** -0.5
    logits = torch.einsum("bhqd,bhkd->bhqk", q, k) * scale
    p = _softmax(logits, axis=-1)
    o = torch.einsum("bhqk,bhkd->bhqd", p, v)
    return o
```

```python
import re

TRANS = ("v_exp_f32", "v_log_f32", "v_rcp_f32", "v_rsq_f32", "v_sqrt_f32", "v_sin_f32", "v_cos_f32")

def regs_of(tok):
    tok = tok.strip()
    tok = tok.lstrip("-")
    if tok.startswith("abs(") or tok.startswith("|"):
        tok = tok.strip("|").replace("abs(", "").rstrip(")")
    m = re.fullmatch(r"([vsa])(\d+)", tok)
    if m: return [(m.group(1), int(m.group(2)))]
    m = re.fullmatch(r"([vsa])\[(\d+):(\d+)\]", tok)
    if m: return [(m.group(1), i) for i in range(int(m.group(2)), int(m.group(3)) + 1)]
    if tok == "vcc": return [("s", 106), ("s", 107)]
    if tok == "exec": return [("s", 126), ("s", 127)]
    if tok == "m0": return [("s", 124)]
    return []

class Ins:
    def __init__(self, text):
        self.text = text
        t = text.split(";")[0].strip()
        self.label = t.endswith(":")
        parts = t.split(None, 1)
        self.op = parts[0] if parts else ""
        rest = parts[1] if len(parts) > 1 else ""
        ops = []; cur = ""; depth = 0
        for ch in rest:
            if ch == "[": depth += 1
            if ch == "]": depth -= 1
            if ch == "," and depth == 0:
                ops.append(cur.strip()); cur = ""
            else: cur += ch
        if cur.strip(): ops.append(cur.strip())
        self.mods = ""
        if ops:
            sp = ops[-1].split(None, 1)
            ops[-1] = sp[0]
            self.mods = sp[1] if len(sp) > 1 else ""
        self.ops = ops
        op = self.op
        self.mfma = op.startswith("v_mfma")
        self.valu = op.startswith("v_") and not self.mfma
        self.dot = op.startswith("v_dot")
        self.trans = any(op.startswith(x) for x in TRANS)
        self.dpp = op.endswith("_dpp")
        self.perm = op.startswith("v_permlane")
        self.rdl = op.startswith("v_readlane") or op.startswith("v_readfirstlane")
        self.vmem = op.startswith("buffer_") or op.startswith("global_")
        self.ds = op.startswith("ds_")
        self.salu = op.startswith("s_")
        self.store = (self.vmem and ("store" in op or "atomic" in op))
        self.wr = []; self.rd = []
        self.srcs = []
        allr = [regs_of(o) for o in ops]
        if self.mfma:
            self.wr = allr[0]; self.A = allr[1]; self.B = allr[2]; self.C = allr[3]
            self.rd = self.A + self.B + self.C
            if "4x4x4" in op: self.passes = 2
            elif "16x16x16" in op or "16x16x32" in op: self.passes = 4
            elif "32x32x16" in op or "32x32x8" in op: self.passes = 8
            else: raise ValueError(op)
        elif self.perm:
            self.wr = allr[0] + allr[1]; self.rd = allr[0] + allr[1]
        elif self.valu:
            self.wr = list(allr[0])
            k = 1
            if op.startswith("v_add_co") or op.startswith("v_addc_co") or op.startswith("v_sub_co"):
                self.wr += allr[1]; k = 2
            self.srcs = allr[k:]
            for r in allr[k:]: self.rd += r
            if op.startswith("v_fmac") or op.startswith("v_dot2c") or (self.dpp and "bank_mask:0xf" not in self.mods):
                self.rd += allr[0]
            if op.startswith("v_cndmask") and len(ops) == 3: self.rd += regs_of("vcc")
        elif self.vmem:
            if "lds" in self.mods.split():
                for r in allr: self.rd += r
                self.rd += regs_of("m0")
            elif "load" in op:
                self.wr = allr[0]
                for r in allr[1:]: self.rd += r
            elif "atomic" in op:
                for r in allr: self.rd += r
                if "sc0" in self.mods.split(): self.wr = allr[0]
            else:
                for r in allr: self.rd += r
            self.data = []
            if "store" in op:
                self.data = allr[0] if op.startswith("buffer_") else allr[1]
        elif self.ds:
            if op.startswith("ds_read") or op.startswith("ds_bpermute") or op.startswith("ds_swizzle") or "rtn" in op:
                self.wr = allr[0]
                for r in allr[1:]: self.rd += r
            else:
                for r in allr: self.rd += r
        elif self.salu:
            if op.startswith("s_cmp") or op.startswith("s_cbranch") or op in ("s_waitcnt", "s_nop", "s_barrier", "s_endpgm", "s_branch", "s_setprio", "s_sleep", "s_setpc_b64"):
                for r in allr: self.rd += r
            else:
                if allr: self.wr = allr[0]
                for r in allr[1:]: self.rd += r
                if "saveexec" in op: self.wr = self.wr + regs_of("exec")
        self.states = 1
        if op == "s_nop": self.states = int(ops[0], 0) + 1
        if self.label or op == "": self.states = 0

def ov(a, b):
    return bool(set(a) & set(b))

def need(p, c):
    n = 0
    pv = [r for r in p.wr if r[0] in "va"]
    ps = [r for r in p.wr if r[0] == "s"]
    if p.valu:
        if c.dpp and c.srcs and ov(pv, c.srcs[0]): n = max(n, 2)
        if c.dpp and ov(pv, c.rd): n = max(n, 2)
        if c.perm and ov(pv, c.rd): n = max(n, 2)
        if c.rdl and ov(pv, c.rd): n = max(n, 1)
        if p.trans and (c.valu or c.mfma) and not c.trans and ov(pv, c.rd + c.wr): n = max(n, 1)
        if p.trans and (c.vmem or c.ds) and ov(pv, c.rd): n = max(n, 1)
        if c.mfma and ov(pv, c.rd): n = max(n, 2)
        if p.dot:
            if c.dot and c.op == p.op:
                ab = (c.srcs[0] + c.srcs[1])
                if ov(pv, ab): n = max(n, 3)
            elif ov(pv, c.rd + c.wr): n = max(n, 3)
        if ps:
            if c.vmem and ov(ps, c.rd): n = max(n, 5)
            if c.valu and ov(ps, c.rd): n = max(n, 4 if c.rdl or c.op.startswith("v_writelane") else 2)
            if c.salu and ov(ps, c.rd): n = max(n, 2)
            if ov(ps, regs_of("exec")): n = max(n, 5)
    if p.mfma:
        tab = {2: (2, 4, 5, 5, 1), 4: (0, 6, 8, 8, 3), 8: (0, 10, 12, 12, 7)}[p.passes]
        if c.mfma:
            if ov(pv, c.C):
                n = max(n, tab[0] if (c.C == p.wr and c.passes == p.passes) else tab[1])
            if ov(pv, c.A + c.B): n = max(n, tab[2])
            if ov(pv, c.wr) and not ov(pv, c.C): n = max(n, tab[1])
        elif (c.valu or c.vmem or c.ds) and ov(pv, c.rd + c.wr): n = max(n, tab[3])
        if c.valu and ov(p.C, c.wr): n = max(n, tab[4])
        if (c.vmem or c.ds) and ov(p.C, c.wr): n = max(n, tab[4])
    if p.vmem and p.store and len(getattr(p, "data", [])) >= 3:
        if ov(p.data, c.wr): n = max(n, 2)
    if p.ds and not p.wr and len(p.rd) >= 4 and ov([r for r in p.rd if r[0] == 'v'], c.wr): n = max(n, 1)
    if p.salu and ov(ps, regs_of("m0")) and c.vmem and "lds" in c.mods.split(): n = max(n, 1)
    return n

class Asm:
    def __init__(self):
        self.ins = []
        self.vm = []
        self.vmid = 0
    def __call__(self, text):
        for line in text.split("\n"):
            line = line.strip()
            if not line: continue
            self.ins.append(Ins(line))
    def vmem(self, text):
        self(text)
        self.vmid += 1
        self.vm.append(self.vmid)
        return self.vmid
    def wait_vm(self, opid):
        if opid not in self.vm: return
        k = self.vm.index(opid)
        n = len(self.vm) - 1 - k
        assert n <= 63
        self(f"s_waitcnt vmcnt({n})")
        self.vm = self.vm[k + 1:]
    def wait_vm_all(self):
        self("s_waitcnt vmcnt(0)")
        self.vm = []
    def finish(self):
        out = []
        nn = 0
        for c in self.ins:
            req = 0
            dist = 0
            for p in reversed(out):
                if dist >= 20: break
                r = need(p, c) if not (p.label or c.label) else 0
                if r - dist > req: req = r - dist
                dist += p.states
            if req > 0:
                out.append(Ins(f"s_nop {req-1}")); nn += req
            out.append(c)
        self.nops = nn
        return "\n".join(("" if i.label else "    ") + i.text for i in out)
```

```python
import sys
from asmlib import Asm
KN = "standalone__kv_cache_quant_int4_int2_kv_with_per_channel_or_per_token_scales__decode_kernel"
HDR = open("standalone__kv_cache_quant_int4_int2_kv_with_per_channel_or_per_token_scales__decode.s.ref").read().split("; Override launch")[0]

def gen(ring=12, jbits=(9,10,11), gbits=(12,13), bbit=14,
        wbits=(15,16,17,18), wgbits=(19,20,21,22,23,24,25,26),
        xorb=((4,8),(5,9),(6,10),(7,11),(8,14)), flags="nt", bar1_at=16, dotmul=True):
    a = Asm()
    LDS_O = 0
    LDS_ML = 32768
    LDS_SZ = 32768 + 512
    MLOFF = 0x100000
    SK, SV, SQ, SKS, SKZ, SVS, SVZ, SOUT, SDBG, SWS = 8, 12, 16, 20, 24, 28, 32, 36, 40, 44
    sW, sGW, sBase, sX, sT, sT2, sG, sBH, sSplit, sLog2e, sScale, sOff = 3, 48, 49, 50, 51, 52, 53, 54, 55, 56, 57, 58
    sMask = 59
    vOff, vNVz, vVsL, vVsH, vLds, vM, vL, vF = 1, 2, 3, 4, 5, 6, 7, 8
    vLane = 9
    T = list(range(10, 24))
    Q = 24; NZ = 40; KS = 48; ACC = 24; SP = 56; BST = 64; RING = 80
    assert RING + 4 * ring <= 128
    NV = RING + 4 * ring

    a(f"s_cmp_ge_u32 s2, 256\ns_cbranch_scc1 L_end")
    for srd, off in ((SK, 8), (SKS, 24), (SKZ, 32), (SQ, 0), (SV, 16), (SVS, 40), (SVZ, 48), (SOUT, 56), (SDBG, 64), (SWS, 72)):
        a(f"s_load_dwordx2 s[{srd}:{srd+1}], s[0:1], {off}")
    a(f"v_lshrrev_b32 v{T[0]}, 6, v0")
    a(f"v_and_b32 v{vLane}, 63, v0")
    a(f"v_readfirstlane_b32 s{sW}, v{T[0]}")
    for srd, sz in ((SK, 0x8000000), (SV, 0x8000000), (SQ, 32768), (SKS, 0x100000), (SKZ, 0x100000), (SVS, 0x80000), (SVZ, 0x80000), (SOUT, 32768), (SDBG, 256), (SWS, 0x200000)):
        a(f"s_mov_b32 s{srd+2}, {sz}\ns_mov_b32 s{srd+3}, 0x20000")
    a(f"s_lshl_b32 s{sGW}, s2, 4\ns_add_u32 s{sGW}, s{sGW}, s{sW}")
    allb = list(wbits) + list(wgbits)
    if allb == list(range(15, 27)):
        a(f"s_lshl_b32 s{sBase}, s{sGW}, 15")
    else:
        a(f"s_mov_b32 s{sBase}, 0")
        for i, b in enumerate(allb):
            a(f"s_bfe_u32 s{sT}, s{sGW}, {i | (1 << 16)}\ns_lshl_b32 s{sT}, s{sT}, {b}\ns_or_b32 s{sBase}, s{sBase}, s{sT}")
    assert all(b < 22 for b in wbits)
    a(f"s_mov_b32 s{sX}, 0")
    for (wb, ab) in xorb:
        a(f"s_bfe_u32 s{sT}, s{sGW}, {wb | (1 << 16)}\ns_lshl_b32 s{sT}, s{sT}, {ab}\ns_xor_b32 s{sX}, s{sX}, s{sT}")
    a(f"s_lshr_b32 s{sG}, s{sBase}, 15")
    a(f"s_lshr_b32 s{sBH}, s{sG}, 7")
    sb = [i for i, b in enumerate(wgbits) if b < 22]
    assert len(sb) == 3
    a(f"s_mov_b32 s{sSplit}, 0")
    for k, i in enumerate(sb):
        a(f"s_bfe_u32 s{sT}, s2, {i | (1 << 16)}\ns_lshl_b32 s{sT}, s{sT}, {k}\ns_or_b32 s{sSplit}, s{sSplit}, s{sT}")
    a(f"s_or_b32 s{sBase}, s{sBase}, s{sX}")
    c_, g0, g1 = T[1], T[2], T[3]
    a(f"v_and_b32 v{c_}, 15, v{vLane}")
    a(f"v_bfe_u32 v{g0}, v{vLane}, 4, 1\nv_bfe_u32 v{g1}, v{vLane}, 5, 1")
    a(f"v_lshlrev_b32 v{vOff}, 4, v{c_}")
    a(f"v_lshl_or_b32 v{vOff}, v{g0}, {gbits[0]}, v{vOff}\nv_lshl_or_b32 v{vOff}, v{g1}, {gbits[1]}, v{vOff}")
    a(f"s_bfe_u32 s{sT2}, s{sX}, {8 | (1 << 16)}\ns_lshl_b32 s{sT2}, s{sT2}, 7")
    pk, pq, pv = T[4], T[5], T[6]
    a(f"v_lshlrev_b32 v{pk}, 3, v{c_}")
    a(f"v_lshrrev_b32 v{T[7]}, 4, v{vLane}")
    a(f"v_lshl_or_b32 v{pq}, v{T[7]}, 8, v{pk}")
    a(f"v_xor_b32 v{pq}, s{sT2}, v{pq}")
    a(f"v_xor_b32 v{T[8]}, 0x80, v{pq}")
    a(f"v_lshl_or_b32 v{pk}, v{g0}, 7, v{pk}")
    a(f"v_xor_b32 v{pk}, s{sT2}, v{pk}")
    a(f"v_mov_b32 v{pv}, 0")
    for lb, ab in ((0, jbits[0]), (1, jbits[1]), (2, jbits[2]), (3, bbit), (4, gbits[0]), (5, gbits[1])):
        a(f"v_bfe_u32 v{T[9]}, v{vLane}, {lb}, 1\nv_lshl_or_b32 v{pv}, v{T[9]}, {ab-8}, v{pv}")
    a(f"s_lshr_b32 s{sT}, s{sX}, 8\ns_and_b32 s{sT}, s{sT}, 0x7e")
    a(f"v_xor_b32 v{pv}, s{sT}, v{pv}")
    a(f"v_lshlrev_b32 v{vLds}, 4, v{c_}\nv_lshl_or_b32 v{vLds}, v{T[7]}, 9, v{vLds}")
    a(f"s_lshl_b32 s{sT}, s{sW}, 11\ns_lshl_b32 s{sT2}, s{sT2}, 1\ns_or_b32 s{sT}, s{sT}, s{sT2}")
    a(f"v_or_b32 v{vLds}, s{sT}, v{vLds}")
    a(f"s_mov_b32 s{sLog2e}, 0x3fb8aa3b\ns_mov_b32 s{sScale}, 0x3db504f3\ns_mov_b32 s{sMask}, 0xffff0000")
    a(f"s_lshl_b32 s4, s{sG}, 8\ns_lshl_b32 s5, s{sBH}, 10\ns_lshl_b32 s6, s{sG}, 7")
    a("s_waitcnt lgkmcnt(0)")

    def ioff(i):
        i &= 31
        hs, j, blk = i & 1, (i >> 1) & 7, i >> 4
        return (hs << 8) | sum(((j >> k) & 1) << jbits[k] for k in range(3)) | (blk << bbit)
    ld = {}
    def issue(i):
        if i >= 64: return
        srd = SK if i < 32 else SV
        r = RING + 4 * (i % ring)
        a(f"s_xor_b32 s{sOff}, s{sBase}, {ioff(i)}")
        ld[i] = a.vmem(f"buffer_load_dwordx4 v[{r}:{r+3}], v{vOff}, s[{srd}:{srd+3}], s{sOff} offen {flags}")
    def R(i, k): return RING + 4 * (i % ring) + k

    issue(0); issue(1)
    P_KS, P_KZ, P_Q0, P_Q1 = BST, BST + 2, BST + 4, BST + 6
    lks = a.vmem(f"buffer_load_dwordx2 v[{P_KS}:{P_KS+1}], v{pk}, s[{SKS}:{SKS+3}], s4 offen")
    lkz = a.vmem(f"buffer_load_dwordx2 v[{P_KZ}:{P_KZ+1}], v{pk}, s[{SKZ}:{SKZ+3}], s4 offen")
    lq0 = a.vmem(f"buffer_load_dwordx2 v[{P_Q0}:{P_Q0+1}], v{pq}, s[{SQ}:{SQ+3}], s5 offen")
    lq1 = a.vmem(f"buffer_load_dwordx2 v[{P_Q1}:{P_Q1+1}], v{T[8]}, s[{SQ}:{SQ+3}], s5 offen")
    for i in range(2, ring): issue(i)
    lvs = a.vmem(f"buffer_load_ushort v{vVsL}, v{pv}, s[{SVS}:{SVS+3}], s6 offen")
    lvz = a.vmem(f"buffer_load_ushort v{vNVz}, v{pv}, s[{SVZ}:{SVZ+3}], s6 offen")
    a.wait_vm(lq1)
    def QR(h, hs, r): return Q + h * 4 + hs * 2 + r
    for hs, src in ((0, P_Q0), (1, P_Q1)):
        for r in range(2):
            a(f"v_mov_b32 v{QR(0,hs,r)}, v{src+r}\nv_mov_b32 v{QR(2,hs,r)}, v{src+r}")
    for hs in range(2):
        for r in range(2):
            a(f"v_permlane32_swap_b32 v{QR(0,hs,r)}, v{QR(2,hs,r)}")
    for hs in range(2):
        for r in range(2):
            a(f"v_mov_b32 v{QR(1,hs,r)}, v{QR(0,hs,r)}\nv_mov_b32 v{QR(3,hs,r)}, v{QR(2,hs,r)}")
    for hs in range(2):
        for r in range(2):
            a(f"v_permlane16_swap_b32 v{QR(0,hs,r)}, v{QR(1,hs,r)}\nv_permlane16_swap_b32 v{QR(2,hs,r)}, v{QR(3,hs,r)}")
    for k in range(4):
        a(f"v_mov_b32 v{BST+8+k}, v{BST+k}")
    for k in range(4):
        a(f"v_permlane16_swap_b32 v{BST+k}, v{BST+8+k}")
    for hs in range(2):
        for r in range(2):
            z = BST + 8 * hs + 2 + r
            s = BST + 8 * hs + r
            a(f"v_lshlrev_b32 v{NZ+hs*4+2*r}, 16, v{z}\nv_and_b32 v{NZ+hs*4+2*r+1}, s{sMask}, v{z}")
            if dotmul:
                a(f"v_and_b32 v{KS+hs*4+2*r}, 0xffff, v{s}\nv_and_b32 v{KS+hs*4+2*r+1}, s{sMask}, v{s}")
            else:
                a(f"v_lshlrev_b32 v{KS+hs*4+2*r}, 16, v{s}\nv_and_b32 v{KS+hs*4+2*r+1}, s{sMask}, v{s}")

    tp = T[0:4]
    H = T[4:8]
    Z = [T[8], T[9]]
    U = [T[10], T[11]]
    for p in range(16):
        i0 = 2 * p
        for hs in range(2):
            i = i0 + hs
            a.wait_vm(ld[i])
            for k in range(4): a(f"v_cvt_f32_i32 v{R(i,k)}, v{R(i,k)}")
            for k in (0, 2):
                a(f"v_pk_add_f32 v[{R(i,k)}:{R(i,k)+1}], v[{R(i,k)}:{R(i,k)+1}], v[{NZ+hs*4+k}:{NZ+hs*4+k+1}] neg_lo:[0,1] neg_hi:[0,1]")
            for r in range(2):
                a(f"v_cvt_pk_bf16_f32 v{tp[2*hs+r]}, v{R(i,2*r)}, v{R(i,2*r+1)}")
        for hs in range(2):
            i = i0 + hs
            if dotmul:
                for k in range(4):
                    a(f"v_dot2_f32_bf16 v{R(i,k)}, v{tp[2*hs+(k>>1)]}, v{KS+hs*4+k}, 0")
            else:
                for r in range(2):
                    a(f"v_lshlrev_b32 v{R(i,2*r)}, 16, v{tp[2*hs+r]}\nv_and_b32 v{R(i,2*r+1)}, s{sMask}, v{tp[2*hs+r]}")
                for k in (0, 2):
                    a(f"v_pk_mul_f32 v[{R(i,k)}:{R(i,k)+1}], v[{R(i,k)}:{R(i,k)+1}], v[{KS+hs*4+k}:{KS+hs*4+k+1}]")
        for hs in range(2):
            i = i0 + hs
            for r in range(2):
                a(f"v_cvt_pk_bf16_f32 v{tp[2*hs+r]}, v{R(i,2*r)}, v{R(i,2*r+1)}")
        issue(i0 + ring); issue(i0 + ring + 1)
        for step in range(4):
            hs, r = step >> 1, step & 1
            for h in range(4):
                a(f"v_dot2_f32_bf16 v{H[h]}, v{tp[step]}, v{QR(h,hs,r)}, " + ("0" if step == 0 else f"v{H[h]}"))
        z = Z[p & 1]
        a(f"v_add_f32_dpp v{H[0]}, v{H[0]}, v{H[0]} row_ror:8 row_mask:0xf bank_mask:0x3")
        a(f"v_add_f32_dpp v{H[1]}, v{H[1]}, v{H[1]} row_ror:8 row_mask:0xf bank_mask:0x3")
        a(f"v_add_f32_dpp v{H[0]}, v{H[2]}, v{H[2]} row_ror:8 row_mask:0xf bank_mask:0xc")
        a(f"v_add_f32_dpp v{H[1]}, v{H[3]}, v{H[3]} row_ror:8 row_mask:0xf bank_mask:0xc")
        a(f"v_add_f32_dpp v{z}, v{H[0]}, v{H[0]} row_half_mirror row_mask:0xf bank_mask:0x5")
        a(f"v_add_f32_dpp v{z}, v{H[1]}, v{H[1]} row_half_mirror row_mask:0xf bank_mask:0xa")
        a(f"v_add_f32_dpp v{z}, v{z}, v{z} quad_perm:[1,0,3,2] row_mask:0xf bank_mask:0xf")
        a(f"v_add_f32_dpp v{z}, v{z}, v{z} quad_perm:[2,3,0,1] row_mask:0xf bank_mask:0xf")
        if p & 1:
            sp = SP + (p >> 1)
            a(f"v_cvt_pk_bf16_f32 v{sp}, v{Z[0]}, v{Z[1]}")
            a(f"v_lshlrev_b32 v{U[0]}, 16, v{sp}\nv_and_b32 v{U[1]}, s{sMask}, v{sp}")
            a(f"v_mul_f32 v{U[0]}, s{sScale}, v{U[0]}\nv_mul_f32 v{U[1]}, s{sScale}, v{U[1]}")
            a(f"v_cvt_pk_bf16_f32 v{sp}, v{U[0]}, v{U[1]}")
    S = BST
    for k in range(8):
        a(f"v_lshlrev_b32 v{S+2*k}, 16, v{SP+k}\nv_and_b32 v{S+2*k+1}, s{sMask}, v{SP+k}")
    a(f"v_max3_f32 v{vM}, v{S}, v{S+1}, v{S+2}")
    for k in range(3, 15, 2):
        a(f"v_max3_f32 v{vM}, v{vM}, v{S+k}, v{S+k+1}")
    a(f"v_max_f32 v{vM}, v{vM}, v{S+15}")
    for sw in ("v_permlane32_swap_b32", "v_permlane16_swap_b32"):
        a(f"v_mov_b32 v{T[0]}, v{vM}\n{sw} v{vM}, v{T[0]}\nv_max_f32 v{vM}, v{vM}, v{T[0]}")
    a(f"v_mul_f32 v{vM}, s{sLog2e}, v{vM}")
    for k in range(16):
        a(f"v_fma_f32 v{S+k}, v{S+k}, s{sLog2e}, -v{vM}")
    for k in range(16):
        a(f"v_exp_f32 v{S+k}, v{S+k}")
    for k in range(8):
        a(f"v_cvt_pk_bf16_f32 v{SP+k}, v{S+2*k}, v{S+2*k+1}")
    for k in (0, 4, 8, 12):
        a(f"v_pk_add_f32 v[{S+k}:{S+k+1}], v[{S+k}:{S+k+1}], v[{S+k+2}:{S+k+3}]")
    for k in (0, 8):
        a(f"v_pk_add_f32 v[{S+k}:{S+k+1}], v[{S+k}:{S+k+1}], v[{S+k+4}:{S+k+5}]")
    a(f"v_pk_add_f32 v[{S}:{S+1}], v[{S}:{S+1}], v[{S+8}:{S+9}]")
    a(f"v_add_f32 v{vL}, v{S}, v{S+1}")
    for sw in ("v_permlane32_swap_b32", "v_permlane16_swap_b32"):
        a(f"v_mov_b32 v{T[0]}, v{vL}\n{sw} v{vL}, v{T[0]}\nv_add_f32 v{vL}, v{vL}, v{T[0]}")
    a(f"v_lshlrev_b32 v{T[0]}, 4, v{vLane}")
    a(f"s_lshl_b32 s{sT}, s{sW}, 2\ns_add_u32 s{sT}, s{sT}, {LDS_ML}")
    a(f"v_add_u32 v{T[0]}, s{sT}, v{T[0]}")
    a("s_mov_b64 exec, 0x1111")
    a(f"ds_write_b32 v{T[0]}, v{vM}\nds_write_b32 v{T[0]}, v{vL} offset:256")
    a("s_mov_b64 exec, -1")
    a.wait_vm(lvz)
    a(f"v_lshlrev_b32 v{vNVz}, 16, v{vNVz}\nv_lshlrev_b32 v{vVsH}, 16, v{vVsL}")

    def AC(hs, c): return ACC + (hs * 4 + c) * 4
    def BS(hs, c, pr): return BST + (hs * 4 + c) * 2 + pr
    zz = [T[0], T[1]]
    ss = [T[2], T[3]]
    tq = T[4:12]
    for qd in range(8):
        i0 = 32 + 4 * qd
        blk, j = qd >> 2, (qd & 3) * 2
        pr = qd & 1
        n0 = blk * 8 + j
        a(f"v_mov_b32_dpp v{zz[0]}, v{vNVz} row_newbcast:{n0} row_mask:0xf bank_mask:0xf")
        a(f"v_mov_b32_dpp v{zz[1]}, v{vNVz} row_newbcast:{n0+1} row_mask:0xf bank_mask:0xf")
        if dotmul:
            a(f"v_mov_b32_dpp v{ss[0]}, v{vVsL} row_newbcast:{n0} row_mask:0xf bank_mask:0xf")
        else:
            a(f"v_mov_b32_dpp v{ss[0]}, v{vVsH} row_newbcast:{n0} row_mask:0xf bank_mask:0xf")
        a(f"v_mov_b32_dpp v{ss[1]}, v{vVsH} row_newbcast:{n0+1} row_mask:0xf bank_mask:0xf")
        for t in range(2):
            for hs in range(2):
                i = i0 + 2 * t + hs
                a.wait_vm(ld[i])
                for k in range(4): a(f"v_cvt_f32_i32 v{R(i,k)}, v{R(i,k)}")
                sel = "op_sel:[0,0] op_sel_hi:[1,0]" if t == 0 else "op_sel:[0,1] op_sel_hi:[1,1]"
                for k in (0, 2):
                    a(f"v_pk_add_f32 v[{R(i,k)}:{R(i,k)+1}], v[{R(i,k)}:{R(i,k)+1}], v[{zz[0]}:{zz[1]}] {sel} neg_lo:[0,1] neg_hi:[0,1]")
        for hs in range(2):
            ia, ib = i0 + hs, i0 + 2 + hs
            for c in range(4):
                a(f"v_cvt_pk_bf16_f32 v{tq[hs*4+c]}, v{R(ia,c)}, v{R(ib,c)}")
        for hs in range(2):
            ia, ib = i0 + hs, i0 + 2 + hs
            for c in range(4):
                if dotmul:
                    a(f"v_dot2_f32_bf16 v{R(ia,c)}, v{tq[hs*4+c]}, v{ss[0]}, 0")
                    a(f"v_dot2_f32_bf16 v{R(ib,c)}, v{tq[hs*4+c]}, v{ss[1]}, 0")
                else:
                    a(f"v_lshlrev_b32 v{R(ia,c)}, 16, v{tq[hs*4+c]}\nv_and_b32 v{R(ib,c)}, s{sMask}, v{tq[hs*4+c]}")
            if not dotmul:
                for k in (0, 2):
                    a(f"v_pk_mul_f32 v[{R(ia,k)}:{R(ia,k)+1}], v[{R(ia,k)}:{R(ia,k)+1}], v[{ss[0]}:{ss[1]}] op_sel:[0,0] op_sel_hi:[1,0]")
                    a(f"v_pk_mul_f32 v[{R(ib,k)}:{R(ib,k)+1}], v[{R(ib,k)}:{R(ib,k)+1}], v[{ss[0]}:{ss[1]}] op_sel:[0,1] op_sel_hi:[1,1]")
        for hs in range(2):
            ia, ib = i0 + hs, i0 + 2 + hs
            for c in range(4):
                a(f"v_cvt_pk_bf16_f32 v{BS(hs,c,pr)}, v{R(ia,c)}, v{R(ib,c)}")
        for k in range(4): issue(i0 + ring + k)
        if pr == 1:
            pa = SP + (qd >> 1) * 2
            for hs in range(2):
                for c in range(4):
                    d = AC(hs, c)
                    a(f"v_mfma_f32_16x16x16_bf16 v[{d}:{d+3}], v[{pa}:{pa+1}], v[{BS(hs,c,0)}:{BS(hs,c,1)}], " + ("0" if qd == 1 else f"v[{d}:{d+3}]"))
        if i0 + 4 - 32 == bar1_at:
            a("s_waitcnt lgkmcnt(0)\ns_barrier")
            e0, e1, e2, e3 = T[12], T[13], vF, T[4]
            a(f"v_lshlrev_b32 v{e3}, 2, v{vLane}")
            a(f"v_add_u32 v{e3}, {LDS_ML}, v{e3}")
            a(f"ds_read_b32 v{e0}, v{e3}\nds_read_b32 v{e1}, v{e3} offset:256")
            a(f"v_and_b32 v{e3}, 0xc0, v{e3}\nv_add_u32 v{e3}, s{sT}, v{e3}")
            a(f"ds_read_b32 v{e2}, v{e3}")
            a("s_waitcnt lgkmcnt(0)")
            a(f"v_max_f32_dpp v{vM}, v{e0}, v{e0} row_ror:8 row_mask:0xf bank_mask:0xf")
            for rr in (4, 2, 1):
                a(f"v_max_f32_dpp v{vM}, v{vM}, v{vM} row_ror:{rr} row_mask:0xf bank_mask:0xf")
            a(f"v_sub_f32 v{e0}, v{e0}, v{vM}\nv_sub_f32 v{e2}, v{e2}, v{vM}")
            a(f"v_exp_f32 v{e0}, v{e0}\nv_exp_f32 v{vF}, v{e2}")
            a(f"v_mul_f32 v{vL}, v{e0}, v{e1}")
            for rr in (8, 4, 2, 1):
                a(f"v_add_f32_dpp v{vL}, v{vL}, v{vL} row_ror:{rr} row_mask:0xf bank_mask:0xf")
    W0 = BST
    for hs in range(2):
        for c in range(4):
            a(f"v_mul_f32 v{W0+hs*4+c}, v{vF}, v{AC(hs,c)}")
    a(f"v_xor_b32 v{T[0]}, 0x100, v{vLds}")
    a(f"ds_write_b128 v{vLds}, v[{W0}:{W0+3}]\nds_write_b128 v{T[0]}, v[{W0+4}:{W0+7}]")
    a("s_waitcnt lgkmcnt(0)\ns_barrier")
    a(f"s_cmp_ge_u32 s{sW}, 4\ns_cbranch_scc1 L_end")
    a(f"v_lshlrev_b32 v{T[0]}, 3, v{vLane}")
    a(f"s_lshl_b32 s{sT}, s{sW}, 9")
    a(f"v_add_u32 v{T[1]}, s{sT}, v{T[0]}")
    RD = 24
    for w in range(16):
        a(f"ds_read_b64 v[{RD+2*w}:{RD+2*w+1}], v{T[1]} offset:{w*2048}")
    a(f"s_lshl_b32 s4, s{sBH}, 2\ns_add_u32 s4, s4, s{sW}")
    a(f"s_lshl_b32 s5, s4, 12\ns_lshl_b32 s6, s{sSplit}, 9\ns_add_u32 s6, s6, s5")
    a(f"s_lshl_b32 s7, s4, 7\ns_add_u32 s7, s7, {MLOFF}")
    a(f"s_lshl_b32 s{sT2}, s{sSplit}, 3\ns_add_u32 s{sT2}, s{sT2}, s7")
    a(f"s_lshl_b32 s{sT}, s{sW}, 4\ns_lshl_b64 exec, 1, s{sT}")
    a.vmem(f"buffer_store_dwordx2 v[{vM}:{vL}], off, s[{SWS}:{SWS+3}], s{sT2} sc1")
    a("s_mov_b64 exec, -1")
    for lvl, st in ((1, 2), (2, 4), (4, 8), (8, 16)):
        if lvl == 1:
            for w in range(0, 16, 2):
                a(f"s_waitcnt lgkmcnt({14-w})")
                a(f"v_pk_add_f32 v[{RD+2*w}:{RD+2*w+1}], v[{RD+2*w}:{RD+2*w+1}], v[{RD+2*(w+lvl)}:{RD+2*(w+lvl)+1}]")
        else:
            for w in range(0, 16, st):
                a(f"v_pk_add_f32 v[{RD+2*w}:{RD+2*w+1}], v[{RD+2*w}:{RD+2*w+1}], v[{RD+2*(w+lvl)}:{RD+2*(w+lvl)+1}]")
    a.vmem(f"buffer_store_dwordx2 v[{RD}:{RD+1}], v{T[0]}, s[{SWS}:{SWS+3}], s6 offen sc1")
    a(f"s_lshl_b32 s{sT}, s{sW}, 3\ns_lshl_b32 s{sT2}, 1, s{sT}")
    a(f"v_mov_b32 v{T[2]}, s{sT2}")
    a(f"s_lshl_b32 s{sOff}, s{sBH}, 2")
    a.wait_vm_all()
    a("s_mov_b64 exec, 1")
    a.vmem(f"buffer_atomic_add v{T[2]}, off, s[{SDBG}:{SDBG+3}], s{sOff} sc0")
    a.wait_vm_all()
    a(f"v_readfirstlane_b32 s{sT2}, v{T[2]}")
    a("s_mov_b64 exec, -1")
    a(f"s_lshr_b32 s{sT2}, s{sT2}, s{sT}\ns_and_b32 s{sT2}, s{sT2}, 0xff")
    a(f"s_cmp_lg_u32 s{sT2}, 7\ns_cbranch_scc1 L_end")
    a(f"v_and_b32 v{T[3]}, 7, v{vLane}\nv_lshlrev_b32 v{T[3]}, 3, v{T[3]}")
    lml = a.vmem(f"buffer_load_dwordx2 v[{T[4]}:{T[5]}], v{T[3]}, s[{SWS}:{SWS+3}], s7 offen sc1")
    lo = []
    for s in range(8):
        lo.append(a.vmem(f"buffer_load_dwordx2 v[{RD+2*s}:{RD+2*s+1}], v{T[0]}, s[{SWS}:{SWS+3}], s5 offen offset:{s*512} sc1"))
    a.wait_vm(lml)
    mx = T[6]
    a(f"v_max_f32_dpp v{mx}, v{T[4]}, v{T[4]} quad_perm:[1,0,3,2] row_mask:0xf bank_mask:0xf")
    a(f"v_max_f32_dpp v{mx}, v{mx}, v{mx} quad_perm:[2,3,0,1] row_mask:0xf bank_mask:0xf")
    a(f"v_max_f32_dpp v{mx}, v{mx}, v{mx} row_half_mirror row_mask:0xf bank_mask:0xf")
    a(f"v_sub_f32 v{T[4]}, v{T[4]}, v{mx}\nv_exp_f32 v{T[4]}, v{T[4]}")
    a(f"v_mul_f32 v{T[5]}, v{T[4]}, v{T[5]}")
    a(f"v_add_f32_dpp v{T[5]}, v{T[5]}, v{T[5]} quad_perm:[1,0,3,2] row_mask:0xf bank_mask:0xf")
    a(f"v_add_f32_dpp v{T[5]}, v{T[5]}, v{T[5]} quad_perm:[2,3,0,1] row_mask:0xf bank_mask:0xf")
    a(f"v_add_f32_dpp v{T[5]}, v{T[5]}, v{T[5]} row_half_mirror row_mask:0xf bank_mask:0xf")
    a(f"v_rcp_f32 v{T[5]}, v{T[5]}")
    a(f"v_mul_f32 v{T[4]}, v{T[4]}, v{T[5]}")
    for s in range(8):
        a.wait_vm(lo[s])
        op = "v_mul_f32_dpp" if s == 0 else "v_fmac_f32_dpp"
        a(f"{op} v{T[6]}, v{T[4]}, v{RD+2*s} row_newbcast:{s} row_mask:0xf bank_mask:0xf")
        a(f"{op} v{T[7]}, v{T[4]}, v{RD+2*s+1} row_newbcast:{s} row_mask:0xf bank_mask:0xf")
    a(f"v_cvt_pk_bf16_f32 v{T[6]}, v{T[6]}, v{T[7]}")
    a(f"v_lshlrev_b32 v{T[0]}, 2, v{vLane}")
    a(f"s_lshl_b32 s4, s4, 8")
    a.vmem(f"buffer_store_dword v{T[6]}, v{T[0]}, s[{SOUT}:{SOUT+3}], s4 offen")
    a("L_end:\ns_endpgm")
    body = a.finish()
    nv = (NV + 7) // 8 * 8
    txt = HDR + f"""; @launch grid=(256,1,1) block=(1024,1,1) lds={LDS_SZ}
.amdgcn_target "amdgcn-amd-amdhsa--gfx950"
.text
.globl {KN}
.p2align 8
.type {KN},@function
{KN}:
{body}
.section .rodata,"a"
.p2align 6
.amdhsa_kernel {KN}
  .amdhsa_next_free_vgpr {nv}
  .amdhsa_next_free_sgpr 64
  .amdhsa_accum_offset {nv}
  .amdhsa_group_segment_fixed_size 0
  .amdhsa_kernarg_size 80
  .amdhsa_user_sgpr_count 2
  .amdhsa_user_sgpr_kernarg_segment_ptr 1
  .amdhsa_system_sgpr_workgroup_id_x 1
  .amdhsa_float_denorm_mode_32 3
.end_amdhsa_kernel
"""
    return txt, len(a.ins), a.nops

if __name__ == "__main__":
    sys.path.insert(0, "bench")
    from build import build
    txt, n, nops = gen()
    p = "k1.s"
    open(p, "w").write(txt)
    print("instrs", n, "nop states", nops)
    print(build(p))
```

```python
import sys
from asmlib import Asm
KN = "standalone__kv_cache_quant_int4_int2_kv_with_per_channel_or_per_token_scales__decode_kernel"
HDR = open("standalone__kv_cache_quant_int4_int2_kv_with_per_channel_or_per_token_scales__decode.s.ref").read().split("; Override launch")[0]

def gen(ring=12, jbits=(9,10,11), gbits=(12,13), bbit=14,
        wbits=(15,16,17,18), wgbits=(19,20,21,22,23,24,25,26),
        xorb=((4,8),(5,9),(6,10),(7,11),(8,14)), flags="nt", diag=False, prio=None, pflags="", notail=False, noparam=False, nocompute=0):
    a = Asm()
    LDS_ML = 32768
    LDS_SZ = 32768 + 512
    MLOFF = 0x100000
    SK, SV, SQ, SKS, SKZ, SVS, SVZ, SOUT, SDBG, SWS = 8, 12, 16, 20, 24, 28, 32, 36, 40, 44
    sW, sGW, sBase, sX, sT, sT2, sG, sBH, sSplit, sLog2e, sScale, sOff = 3, 48, 49, 50, 51, 52, 53, 54, 55, 56, 57, 58
    sMask = 59
    vOff, vVz, vVsL, vVsH, vLds, vLane, vM, vL = 1, 2, 3, 4, 5, 9, 6, 7
    vMk0, vMk1 = 22, 23
    T = list(range(10, 22))
    Q = 24; NZ = 40; KS = 48; ACC = 24; SP = 56; S = 64; RING = 80
    assert RING + 4 * ring <= 128
    NV = RING + 4 * ring

    a(f"s_cmp_ge_u32 s2, 256\ns_cbranch_scc1 L_exit")
    nst = [0]
    def stamp():
        if diag:
            a(f"s_memrealtime s[{64+2*nst[0]}:{65+2*nst[0]}]\ns_waitcnt lgkmcnt(0)")
            nst[0] += 1
    if diag:
        for k in range(64, 96): a(f"s_mov_b32 s{k}, 0")
    stamp()
    for srd, off in ((SK, 8), (SKS, 24), (SKZ, 32), (SQ, 0), (SV, 16), (SVS, 40), (SVZ, 48), (SOUT, 56), (SDBG, 64), (SWS, 72)):
        a(f"s_load_dwordx2 s[{srd}:{srd+1}], s[0:1], {off}")
    a(f"v_lshrrev_b32 v{T[0]}, 6, v0")
    a(f"v_and_b32 v{vLane}, 63, v0")
    a(f"v_readfirstlane_b32 s{sW}, v{T[0]}")
    for srd, sz in ((SK, 0x8000000), (SV, 0x8000000), (SQ, 32768), (SKS, 0x100000), (SKZ, 0x100000), (SVS, 0x80000), (SVZ, 0x80000), (SOUT, 32768), (SDBG, 256), (SWS, 0x400000 if diag else 0x200000)):
        a(f"s_mov_b32 s{srd+2}, {sz}\ns_mov_b32 s{srd+3}, 0x20000")
    a(f"s_lshl_b32 s{sGW}, s2, 4\ns_add_u32 s{sGW}, s{sGW}, s{sW}")
    allb = list(wbits) + list(wgbits)
    if allb == list(range(15, 27)):
        a(f"s_lshl_b32 s{sBase}, s{sGW}, 15")
    else:
        a(f"s_mov_b32 s{sBase}, 0")
        for i, b in enumerate(allb):
            a(f"s_bfe_u32 s{sT}, s{sGW}, {i | (1 << 16)}\ns_lshl_b32 s{sT}, s{sT}, {b}\ns_or_b32 s{sBase}, s{sBase}, s{sT}")
    assert all(b < 22 for b in wbits)
    a(f"s_mov_b32 s{sX}, 0")
    for (wb, ab) in xorb:
        a(f"s_bfe_u32 s{sT}, s{sGW}, {wb | (1 << 16)}\ns_lshl_b32 s{sT}, s{sT}, {ab}\ns_xor_b32 s{sX}, s{sX}, s{sT}")
    a(f"s_lshr_b32 s{sG}, s{sBase}, 15")
    a(f"s_lshr_b32 s{sBH}, s{sG}, 7")
    sb = [i for i, b in enumerate(wgbits) if b < 22]
    assert len(sb) == 3
    a(f"s_mov_b32 s{sSplit}, 0")
    for k, i in enumerate(sb):
        a(f"s_bfe_u32 s{sT}, s2, {i | (1 << 16)}\ns_lshl_b32 s{sT}, s{sT}, {k}\ns_or_b32 s{sSplit}, s{sSplit}, s{sT}")
    a(f"s_or_b32 s{sBase}, s{sBase}, s{sX}")
    c_, g0, g1 = T[1], T[2], T[3]
    a(f"v_and_b32 v{c_}, 15, v{vLane}")
    a(f"v_bfe_u32 v{g0}, v{vLane}, 4, 1\nv_bfe_u32 v{g1}, v{vLane}, 5, 1")
    a(f"v_lshlrev_b32 v{vOff}, 4, v{c_}")
    a(f"v_lshl_or_b32 v{vOff}, v{g0}, {gbits[0]}, v{vOff}\nv_lshl_or_b32 v{vOff}, v{g1}, {gbits[1]}, v{vOff}")
    a(f"s_bfe_u32 s{sT2}, s{sX}, {8 | (1 << 16)}\ns_lshl_b32 s{sT2}, s{sT2}, 7")
    pk, pq, pv = T[4], T[5], T[6]
    a(f"v_lshlrev_b32 v{pk}, 3, v{c_}")
    a(f"v_lshrrev_b32 v{T[7]}, 4, v{vLane}")
    a(f"v_lshl_or_b32 v{pq}, v{T[7]}, 8, v{pk}")
    a(f"v_xor_b32 v{pq}, s{sT2}, v{pq}")
    a(f"v_xor_b32 v{T[8]}, 0x80, v{pq}")
    a(f"v_lshl_or_b32 v{pk}, v{g0}, 7, v{pk}")
    a(f"v_xor_b32 v{pk}, s{sT2}, v{pk}")
    a(f"v_mov_b32 v{pv}, 0")
    for lb, ab in ((0, jbits[0]), (1, jbits[1]), (2, jbits[2]), (3, bbit), (4, gbits[0]), (5, gbits[1])):
        a(f"v_bfe_u32 v{T[9]}, v{vLane}, {lb}, 1\nv_lshl_or_b32 v{pv}, v{T[9]}, {ab-8}, v{pv}")
    a(f"s_lshr_b32 s{sT}, s{sX}, 8\ns_and_b32 s{sT}, s{sT}, 0x7e")
    a(f"v_xor_b32 v{pv}, s{sT}, v{pv}")
    a(f"v_lshlrev_b32 v{vLds}, 4, v{c_}\nv_lshl_or_b32 v{vLds}, v{T[7]}, 9, v{vLds}")
    a(f"s_lshl_b32 s{sT}, s{sW}, 11\ns_lshl_b32 s{sT2}, s{sT2}, 1\ns_or_b32 s{sT}, s{sT}, s{sT2}")
    a(f"v_or_b32 v{vLds}, s{sT}, v{vLds}")
    a(f"s_mov_b32 s{sLog2e}, 0x3fb8aa3b\ns_mov_b32 s{sScale}, 0x3db504f3\ns_mov_b32 s{sMask}, 0xffff0000")
    a(f"v_and_b32 v{T[9]}, 1, v{vLane}\nv_lshlrev_b32 v{T[9]}, 4, v{T[9]}")
    a(f"v_mov_b32 v{T[10]}, 0xffff\nv_lshlrev_b32 v{T[10]}, v{T[9]}, v{T[10]}")
    a(f"v_bfe_i32 v{T[9]}, v{vLane}, 1, 1")
    a(f"v_and_b32 v{vMk1}, v{T[9]}, v{T[10]}\nv_xor_b32 v{vMk0}, v{vMk1}, v{T[10]}")
    a(f"s_lshl_b32 s4, s{sG}, 8\ns_lshl_b32 s5, s{sBH}, 10\ns_lshl_b32 s6, s{sG}, 7")
    if noparam: a("s_mov_b32 s4, 0\ns_mov_b32 s5, 0\ns_mov_b32 s6, 0")
    a("s_waitcnt lgkmcnt(0)")
    stamp()

    def ioff(i):
        i &= 31
        hs, j, blk = i & 1, (i >> 1) & 7, i >> 4
        return (hs << 8) | sum(((j >> k) & 1) << jbits[k] for k in range(3)) | (blk << bbit)
    ld = {}
    def issue(i):
        if i >= 64: return
        if prio and i in prio: a(f"s_setprio {prio[i]}")
        srd = SK if i < 32 else SV
        r = RING + 4 * (i % ring)
        a(f"s_xor_b32 s{sOff}, s{sBase}, {ioff(i)}")
        ld[i] = a.vmem(f"buffer_load_dwordx4 v[{r}:{r+3}], v{vOff}, s[{srd}:{srd+3}], s{sOff} offen {flags}")
    def R(i, k): return RING + 4 * (i % ring) + k

    issue(0); issue(1)
    BST = S
    P_KS, P_KZ, P_Q0, P_Q1 = BST, BST + 2, BST + 4, BST + 6
    lks = a.vmem(f"buffer_load_dwordx2 v[{P_KS}:{P_KS+1}], v{pk}, s[{SKS}:{SKS+3}], s4 offen {pflags}")
    lkz = a.vmem(f"buffer_load_dwordx2 v[{P_KZ}:{P_KZ+1}], v{pk}, s[{SKZ}:{SKZ+3}], s4 offen {pflags}")
    lq0 = a.vmem(f"buffer_load_dwordx2 v[{P_Q0}:{P_Q0+1}], v{pq}, s[{SQ}:{SQ+3}], s5 offen")
    lq1 = a.vmem(f"buffer_load_dwordx2 v[{P_Q1}:{P_Q1+1}], v{T[8]}, s[{SQ}:{SQ+3}], s5 offen")
    for i in range(2, ring): issue(i)
    lvs = a.vmem(f"buffer_load_ushort v{vVsL}, v{pv}, s[{SVS}:{SVS+3}], s6 offen {pflags}")
    lvz = a.vmem(f"buffer_load_ushort v{vVz}, v{pv}, s[{SVZ}:{SVZ+3}], s6 offen {pflags}")
    a.wait_vm(lq1)
    stamp()
    def QR(h, hs, r): return Q + h * 4 + hs * 2 + r
    for hs, src in ((0, P_Q0), (1, P_Q1)):
        for r in range(2):
            a(f"v_mov_b32 v{QR(0,hs,r)}, v{src+r}\nv_mov_b32 v{QR(2,hs,r)}, v{src+r}")
    for hs in range(2):
        for r in range(2):
            a(f"v_permlane32_swap_b32 v{QR(0,hs,r)}, v{QR(2,hs,r)}")
    for hs in range(2):
        for r in range(2):
            a(f"v_mov_b32 v{QR(1,hs,r)}, v{QR(0,hs,r)}\nv_mov_b32 v{QR(3,hs,r)}, v{QR(2,hs,r)}")
    for hs in range(2):
        for r in range(2):
            a(f"v_permlane16_swap_b32 v{QR(0,hs,r)}, v{QR(1,hs,r)}\nv_permlane16_swap_b32 v{QR(2,hs,r)}, v{QR(3,hs,r)}")
    for k in range(4):
        a(f"v_mov_b32 v{BST+8+k}, v{BST+k}")
    for k in range(4):
        a(f"v_permlane16_swap_b32 v{BST+k}, v{BST+8+k}")
    for hs in range(2):
        for r in range(2):
            z = BST + 8 * hs + 2 + r
            s = BST + 8 * hs + r
            a(f"v_lshlrev_b32 v{NZ+hs*4+2*r}, 16, v{z}\nv_and_b32 v{NZ+hs*4+2*r+1}, s{sMask}, v{z}")
            a(f"v_and_b32 v{KS+hs*4+2*r}, 0xffff, v{s}\nv_and_b32 v{KS+hs*4+2*r+1}, s{sMask}, v{s}")

    tp = T[0:4]; H = T[4:8]; Z = [T[8], T[9]]; U = [T[10], T[11]]
    for p in range(16):
        i0 = 2 * p
        for hs in range(2):
            i = i0 + hs
            a.wait_vm(ld[i])
            for k in range(4): a(f"v_cvt_f32_i32 v{R(i,k)}, v{R(i,k)}")
            for k in (0, 2):
                a(f"v_pk_add_f32 v[{R(i,k)}:{R(i,k)+1}], v[{R(i,k)}:{R(i,k)+1}], v[{NZ+hs*4+k}:{NZ+hs*4+k+1}] neg_lo:[0,1] neg_hi:[0,1]")
            for r in range(2):
                a(f"v_cvt_pk_bf16_f32 v{tp[2*hs+r]}, v{R(i,2*r)}, v{R(i,2*r+1)}")
        for hs in range(2):
            i = i0 + hs
            for k in range(4):
                a(f"v_dot2_f32_bf16 v{R(i,k)}, v{tp[2*hs+(k>>1)]}, v{KS+hs*4+k}, 0")
        for hs in range(2):
            i = i0 + hs
            for r in range(2):
                a(f"v_cvt_pk_bf16_f32 v{tp[2*hs+r]}, v{R(i,2*r)}, v{R(i,2*r+1)}")
        issue(i0 + ring); issue(i0 + ring + 1)
        for step in range(4 if nocompute < 1 else 1):
            hs, r = step >> 1, step & 1
            for h in range(4):
                a(f"v_dot2_f32_bf16 v{H[h]}, v{tp[step]}, v{QR(h,hs,r)}, " + ("0" if step == 0 else f"v{H[h]}"))
        z = Z[p & 1]
        a(f"v_add_f32_dpp v{H[0]}, v{H[0]}, v{H[0]} row_ror:8 row_mask:0xf bank_mask:0x3")
        a(f"v_add_f32_dpp v{H[1]}, v{H[1]}, v{H[1]} row_ror:8 row_mask:0xf bank_mask:0x3")
        a(f"v_add_f32_dpp v{H[0]}, v{H[2]}, v{H[2]} row_ror:8 row_mask:0xf bank_mask:0xc")
        a(f"v_add_f32_dpp v{H[1]}, v{H[3]}, v{H[3]} row_ror:8 row_mask:0xf bank_mask:0xc")
        a(f"v_add_f32_dpp v{z}, v{H[0]}, v{H[0]} row_half_mirror row_mask:0xf bank_mask:0x5")
        a(f"v_add_f32_dpp v{z}, v{H[1]}, v{H[1]} row_half_mirror row_mask:0xf bank_mask:0xa")
        a(f"v_add_f32_dpp v{z}, v{z}, v{z} quad_perm:[1,0,3,2] row_mask:0xf bank_mask:0xf")
        a(f"v_add_f32_dpp v{z}, v{z}, v{z} quad_perm:[2,3,0,1] row_mask:0xf bank_mask:0xf")
        if p & 1:
            sp = SP + (p >> 1)
            a(f"v_cvt_pk_bf16_f32 v{sp}, v{Z[0]}, v{Z[1]}")
            a(f"v_lshlrev_b32 v{U[0]}, 16, v{sp}\nv_and_b32 v{U[1]}, s{sMask}, v{sp}")
            a(f"v_mul_f32 v{U[0]}, s{sScale}, v{U[0]}\nv_mul_f32 v{U[1]}, s{sScale}, v{U[1]}")
            a(f"v_cvt_pk_bf16_f32 v{sp}, v{U[0]}, v{U[1]}")
    stamp()
    for k in range(8):
        a(f"v_lshlrev_b32 v{S+2*k}, 16, v{SP+k}\nv_and_b32 v{S+2*k+1}, s{sMask}, v{SP+k}")
    a(f"v_max3_f32 v{vM}, v{S}, v{S+1}, v{S+2}")
    for k in range(3, 15, 2):
        a(f"v_max3_f32 v{vM}, v{vM}, v{S+k}, v{S+k+1}")
    a(f"v_max_f32 v{vM}, v{vM}, v{S+15}")
    for sw in ("v_permlane32_swap_b32", "v_permlane16_swap_b32"):
        a(f"v_mov_b32 v{T[0]}, v{vM}\n{sw} v{vM}, v{T[0]}\nv_max_f32 v{vM}, v{vM}, v{T[0]}")
    a(f"v_mul_f32 v{vM}, s{sLog2e}, v{vM}")
    for k in range(16):
        a(f"v_fma_f32 v{S+k}, v{S+k}, s{sLog2e}, -v{vM}")
    for k in range(16):
        a(f"v_exp_f32 v{S+k}, v{S+k}")
    for k in range(4):
        a(f"v_pk_add_f32 v[{SP+2*k}:{SP+2*k+1}], v[{S+4*k}:{S+4*k+1}], v[{S+4*k+2}:{S+4*k+3}]")
    for k in (0, 4):
        a(f"v_pk_add_f32 v[{SP+k}:{SP+k+1}], v[{SP+k}:{SP+k+1}], v[{SP+k+2}:{SP+k+3}]")
    a(f"v_pk_add_f32 v[{SP}:{SP+1}], v[{SP}:{SP+1}], v[{SP+4}:{SP+5}]")
    a(f"v_add_f32 v{vL}, v{SP}, v{SP+1}")
    for k in range(16):
        a(f"v_cvt_pk_bf16_f32 v{S+k}, v{S+k}, v{S+k}")
    for sw in ("v_permlane32_swap_b32", "v_permlane16_swap_b32"):
        a(f"v_mov_b32 v{T[0]}, v{vL}\n{sw} v{vL}, v{T[0]}\nv_add_f32 v{vL}, v{vL}, v{T[0]}")
    a(f"v_lshlrev_b32 v{T[0]}, 4, v{vLane}")
    a(f"s_lshl_b32 s{sT}, s{sW}, 2\ns_add_u32 s{sT}, s{sT}, {LDS_ML}")
    a(f"v_add_u32 v{T[0]}, s{sT}, v{T[0]}")
    a("s_mov_b64 exec, 0x1111")
    a(f"ds_write_b32 v{T[0]}, v{vM}\nds_write_b32 v{T[0]}, v{vL} offset:256")
    a("s_mov_b64 exec, -1")
    a.wait_vm(lvz)
    a(f"v_lshlrev_b32 v{vVz}, 16, v{vVz}\nv_lshlrev_b32 v{vVsH}, 16, v{vVsL}")

    PA = [32, 34]
    PZ = [36, 38]
    PS = [40, 42]
    tq = [44, 46]
    BB = [48, 50, 52, 54]
    for p in range(16):
        i0 = 32 + 2 * p
        b = p & 1
        a(f"v_mov_b32_dpp v{PZ[b]}, v{vVz} row_newbcast:{p} row_mask:0xf bank_mask:0xf")
        a(f"v_mov_b32_dpp v{PS[b]}, v{vVsL} row_newbcast:{p} row_mask:0xf bank_mask:0xf")
        a(f"v_mov_b32_dpp v{PS[b]+1}, v{vVsH} row_newbcast:{p} row_mask:0xf bank_mask:0xf")
        a(f"v_and_b32 v{PA[b]}, v{vMk0}, v{S+p}\nv_and_b32 v{PA[b]+1}, v{vMk1}, v{S+p}")
        for hs in range(2):
            i = i0 + hs
            a.wait_vm(ld[i])
            for k in range(4): a(f"v_cvt_f32_i32 v{R(i,k)}, v{R(i,k)}")
            for k in (0, 2):
                a(f"v_pk_add_f32 v[{R(i,k)}:{R(i,k)+1}], v[{R(i,k)}:{R(i,k)+1}], v[{PZ[b]}:{PZ[b]+1}] op_sel:[0,0] op_sel_hi:[1,0] neg_lo:[0,1] neg_hi:[0,1]")
            for r in range(2):
                a(f"v_cvt_pk_bf16_f32 v{tq[hs]+r}, v{R(i,2*r)}, v{R(i,2*r+1)}")
            for k in range(4):
                a(f"v_dot2_f32_bf16 v{R(i,k)}, v{tq[hs]+(k>>1)}, v{PS[b]+(k&1)}, 0")
            bb = BB[2 * b + hs]
            for r in range(2):
                a(f"v_cvt_pk_bf16_f32 v{bb+r}, v{R(i,2*r)}, v{R(i,2*r+1)}")
            issue(i + ring)
            d = ACC + 4 * hs
            a(f"v_mfma_f32_16x16x16_bf16 v[{d}:{d+3}], v[{PA[b]}:{PA[b]+1}], v[{bb}:{bb+1}], " + ("0" if p == 0 else f"v[{d}:{d+3}]"))
    stamp()
    a(f"v_xor_b32 v{T[0]}, 0x100, v{vLds}")
    a(f"ds_write_b128 v{vLds}, v[{ACC}:{ACC+3}]\nds_write_b128 v{T[0]}, v[{ACC+4}:{ACC+7}]")
    a(f"v_lshlrev_b32 v{T[0]}, 3, v{vLane}")
    a(f"s_lshl_b32 s{sT}, s{sW}, 9")
    a(f"v_add_u32 v{T[1]}, s{sT}, v{T[0]}")
    a(f"v_and_b32 v{T[2]}, 15, v{vLane}\nv_lshlrev_b32 v{T[2]}, 2, v{T[2]}")
    a(f"s_lshl_b32 s{sT}, s{sW}, 6\ns_add_u32 s{sT}, s{sT}, {LDS_ML}")
    a(f"v_add_u32 v{T[2]}, s{sT}, v{T[2]}")
    a(f"s_lshl_b32 s4, s{sBH}, 2\ns_add_u32 s4, s4, s{sW}")
    a(f"s_lshl_b32 s5, s4, 12\ns_lshl_b32 s6, s{sSplit}, 9\ns_add_u32 s6, s6, s5")
    a(f"s_lshl_b32 s7, s4, 7\ns_add_u32 s7, s7, {MLOFF}")
    a(f"s_lshl_b32 s{sT2}, s{sSplit}, 3\ns_add_u32 s{sT2}, s{sT2}, s7")
    a("s_waitcnt lgkmcnt(0)\ns_barrier")
    stamp()
    if notail: a("s_branch L_end")
    a(f"s_cmp_ge_u32 s{sW}, 4\ns_cbranch_scc1 L_end")
    RD = 32
    e0, e1 = T[4], T[5]
    a(f"ds_read_b32 v{e0}, v{T[2]}\nds_read_b32 v{e1}, v{T[2]} offset:256")
    for w in range(12):
        a(f"ds_read_b64 v[{RD+2*w}:{RD+2*w+1}], v{T[1]} offset:{w*2048}")
    a("s_waitcnt lgkmcnt(12)")
    an = 12
    a(f"v_max_f32_dpp v{vM}, v{e0}, v{e0} row_ror:8 row_mask:0xf bank_mask:0xf")
    for rr in (4, 2, 1):
        a(f"ds_read_b64 v[{RD+2*an}:{RD+2*an+1}], v{T[1]} offset:{an*2048}"); an += 1
        a(f"v_max_f32_dpp v{vM}, v{vM}, v{vM} row_ror:{rr} row_mask:0xf bank_mask:0xf")
    a(f"ds_read_b64 v[{RD+2*an}:{RD+2*an+1}], v{T[1]} offset:{an*2048}")
    a(f"v_sub_f32 v{e0}, v{e0}, v{vM}\nv_exp_f32 v{e0}, v{e0}")
    a(f"v_mul_f32 v{vL}, v{e0}, v{e1}")
    O0, O1, O2, O3 = T[6], T[7], T[8], T[9]
    red = [8, 4, 2, 1]
    for w in range(16):
        a(f"s_waitcnt lgkmcnt({15-w})")
        op = "v_mul_f32_dpp" if w < 2 else "v_fmac_f32_dpp"
        x0, x1 = (O0, O1) if w % 2 == 0 else (O2, O3)
        a(f"{op} v{x0}, v{e0}, v{RD+2*w} row_newbcast:{w} row_mask:0xf bank_mask:0xf")
        a(f"{op} v{x1}, v{e0}, v{RD+2*w+1} row_newbcast:{w} row_mask:0xf bank_mask:0xf")
        if w < 4:
            a(f"v_add_f32_dpp v{vL}, v{vL}, v{vL} row_ror:{red[w]} row_mask:0xf bank_mask:0xf")
        if w == 5:
            a("s_mov_b64 exec, 1")
            a.vmem(f"buffer_store_dwordx2 v[{vM}:{vL}], off, s[{SWS}:{SWS+3}], s{sT2} sc1")
            a("s_mov_b64 exec, -1")
    a(f"v_pk_add_f32 v[{O0}:{O1}], v[{O0}:{O1}], v[{O2}:{O3}]")
    a.vmem(f"buffer_store_dwordx2 v[{O0}:{O1}], v{T[0]}, s[{SWS}:{SWS+3}], s6 offen sc1")
    a(f"s_lshl_b32 s{sT}, s{sW}, 3\ns_lshl_b32 s{sT2}, 1, s{sT}")
    a(f"v_mov_b32 v{T[2]}, s{sT2}")
    a(f"s_lshl_b32 s{sOff}, s{sBH}, 2")
    a(f"v_and_b32 v{T[3]}, 7, v{vLane}\nv_lshlrev_b32 v{T[3]}, 3, v{T[3]}")
    a.wait_vm_all()
    stamp()
    a("s_mov_b64 exec, 1")
    a.vmem(f"buffer_atomic_add v{T[2]}, off, s[{SDBG}:{SDBG+3}], s{sOff} sc0")
    a.wait_vm_all()
    a(f"v_readfirstlane_b32 s{sT2}, v{T[2]}")
    stamp()
    a("s_mov_b64 exec, -1")
    a(f"s_lshr_b32 s{sT2}, s{sT2}, s{sT}\ns_and_b32 s{sT2}, s{sT2}, 0xff")
    a(f"s_cmp_lg_u32 s{sT2}, 7\ns_cbranch_scc1 L_end")
    lml = a.vmem(f"buffer_load_dwordx2 v[{T[4]}:{T[5]}], v{T[3]}, s[{SWS}:{SWS+3}], s7 offen sc1")
    lo = []
    for s in range(8):
        lo.append(a.vmem(f"buffer_load_dwordx2 v[{RD+2*s}:{RD+2*s+1}], v{T[0]}, s[{SWS}:{SWS+3}], s5 offen offset:{s*512} sc1"))
    a.wait_vm(lml)
    mx = T[6]
    a(f"v_max_f32_dpp v{mx}, v{T[4]}, v{T[4]} quad_perm:[1,0,3,2] row_mask:0xf bank_mask:0xf")
    a(f"v_max_f32_dpp v{mx}, v{mx}, v{mx} quad_perm:[2,3,0,1] row_mask:0xf bank_mask:0xf")
    a(f"v_max_f32_dpp v{mx}, v{mx}, v{mx} row_half_mirror row_mask:0xf bank_mask:0xf")
    a(f"v_sub_f32 v{T[4]}, v{T[4]}, v{mx}\nv_exp_f32 v{T[4]}, v{T[4]}")
    a(f"v_mul_f32 v{T[5]}, v{T[4]}, v{T[5]}")
    a(f"v_add_f32_dpp v{T[5]}, v{T[5]}, v{T[5]} quad_perm:[1,0,3,2] row_mask:0xf bank_mask:0xf")
    a(f"v_add_f32_dpp v{T[5]}, v{T[5]}, v{T[5]} quad_perm:[2,3,0,1] row_mask:0xf bank_mask:0xf")
    a(f"v_add_f32_dpp v{T[5]}, v{T[5]}, v{T[5]} row_half_mirror row_mask:0xf bank_mask:0xf")
    a(f"v_rcp_f32 v{T[5]}, v{T[5]}")
    a(f"v_mul_f32 v{T[4]}, v{T[4]}, v{T[5]}")
    for s in range(8):
        a.wait_vm(lo[s])
        op = "v_mul_f32_dpp" if s == 0 else "v_fmac_f32_dpp"
        a(f"{op} v{T[6]}, v{T[4]}, v{RD+2*s} row_newbcast:{s} row_mask:0xf bank_mask:0xf")
        a(f"{op} v{T[7]}, v{T[4]}, v{RD+2*s+1} row_newbcast:{s} row_mask:0xf bank_mask:0xf")
    a(f"v_cvt_pk_bf16_f32 v{T[6]}, v{T[6]}, v{T[7]}")
    a(f"v_lshlrev_b32 v{T[0]}, 2, v{vLane}")
    a(f"s_lshl_b32 s4, s4, 8")
    a.vmem(f"buffer_store_dword v{T[6]}, v{T[0]}, s[{SOUT}:{SOUT+3}], s4 offen")
    if diag:
        a.wait_vm_all()
        stamp()
    a("L_end:")
    if diag:
        a("s_mov_b64 exec, 1")
        a(f"s_getreg_b32 s94, hwreg(HW_REG_XCC_ID)")
        a(f"s_lshl_b32 s4, s{sGW}, 6\ns_add_u32 s4, s4, 0x200000")
        for k in range(16):
            a(f"v_mov_b32 v{24+k}, s{64+2*k}")
        for k in range(4):
            a(f"buffer_store_dwordx4 v[{24+4*k}:{27+4*k}], off, s[{SWS}:{SWS+3}], s4 offset:{16*k}")
    a("L_exit:\ns_endpgm")
    body = a.finish()
    nv = (NV + 7) // 8 * 8
    txt = HDR + f"""; @launch grid=(256,1,1) block=(1024,1,1) lds={LDS_SZ}
.amdgcn_target "amdgcn-amd-amdhsa--gfx950"
.text
.globl {KN}
.p2align 8
.type {KN},@function
{KN}:
{body}
.section .rodata,"a"
.p2align 6
.amdhsa_kernel {KN}
  .amdhsa_next_free_vgpr {nv}
  .amdhsa_next_free_sgpr {96 if diag else 64}
  .amdhsa_accum_offset {nv}
  .amdhsa_group_segment_fixed_size 0
  .amdhsa_kernarg_size 80
  .amdhsa_user_sgpr_count 2
  .amdhsa_user_sgpr_kernarg_segment_ptr 1
  .amdhsa_system_sgpr_workgroup_id_x 1
  .amdhsa_float_denorm_mode_32 3
.end_amdhsa_kernel
"""
    return txt, len(a.ins), a.nops

if __name__ == "__main__":
    sys.path.insert(0, "bench")
    from build import build
    kw = eval("dict(" + (sys.argv[2] if len(sys.argv) > 2 else "") + ")")
    txt, n, nops = gen(**kw)
    p = f"bench/{sys.argv[1]}.s"
    open(p, "w").write(txt)
    print("instrs", n, "nop states", nops)
    print(build(p))
```

```python
from asmlib import Asm
def report_kernel(nwaves=4096, nst=9):
    a = Asm()
    a("s_cmp_ge_u32 s2, 1\ns_cbranch_scc1 R_end")
    a("s_load_dwordx2 s[8:9], s[0:1], 72\ns_load_dwordx2 s[12:13], s[0:1], 64")
    a("s_mov_b32 s10, 0x400000\ns_mov_b32 s11, 0x20000\ns_mov_b32 s14, 256\ns_mov_b32 s15, 0x20000")
    a("v_lshlrev_b32 v1, 2, v0\nv_bfe_u32 v2, v0, 4, 2\nv_cmp_eq_u32 vcc, 1, v2\nv_mov_b32 v3, 0\nv_mov_b32 v4, -1\nv_cndmask_b32 v3, v3, v4, vcc")
    a("ds_write_b32 v1, v3")
    a("v_lshlrev_b32 v5, 6, v0\ns_mov_b32 s4, 0x200000\nv_mov_b32 v6, 0\nv_mov_b32 v7, 1")
    a("s_waitcnt lgkmcnt(0)\ns_barrier")
    per = nwaves // 1024
    for r in range(per):
        a(f"s_add_u32 s5, s4, {r*65536}")
        for k in range(3):
            a(f"buffer_load_dwordx4 v[{16+r*12+4*k}:{19+r*12+4*k}], v5, s[8:11], s5 offen offset:{16*k} sc1")
    a("s_waitcnt vmcnt(0)")
    for r in range(per):
        a(f"ds_min_u32 v6, v{16+r*12} offset:64")
    a("s_waitcnt lgkmcnt(0)\ns_barrier")
    a("ds_read_b32 v8, v6 offset:64\ns_waitcnt lgkmcnt(0)\ns_barrier")
    for r in range(per):
        for k in range(nst):
            v = 16 + r * 12 + k
            a(f"v_cmp_ne_u32 vcc, 0, v{v}\nv_sub_u32 v{v}, v{v}, v8")
            a(f"s_and_saveexec_b64 s[6:7], vcc")
            a(f"ds_max_u32 v6, v{v} offset:{4*k}")
            if k: a(f"ds_min_u32 v6, v{v} offset:{64+4*k}")
            a(f"ds_add_u32 v6, v{v} offset:{128+4*k}\nds_add_u32 v6, v7 offset:{192+4*k}")
            a("s_mov_b64 exec, s[6:7]")
    a("s_waitcnt lgkmcnt(0)\ns_barrier")
    a("v_cmp_gt_u32 vcc, 16, v0\ns_and_saveexec_b64 s[6:7], vcc\ns_cbranch_execz R_end")
    a("ds_read_b32 v9, v1\nds_read_b32 v10, v1 offset:64\nds_read_b32 v11, v1 offset:128\nds_read_b32 v12, v1 offset:192\ns_waitcnt lgkmcnt(0)")
    a("v_cvt_f32_u32 v11, v11\nv_cvt_f32_u32 v12, v12\nv_rcp_f32 v12, v12\nv_mul_f32 v11, v11, v12\nv_cvt_u32_f32 v11, v11")
    a("v_mul_u32_u24 v11, 100000, v11\nv_add_u32 v9, v9, v11")
    a("buffer_store_dword v9, v1, s[12:15], 0 offen")
    a("R_end:\ns_endpgm")
    return """
.text
.globl r_kernel
.p2align 8
.type r_kernel,@function
r_kernel:
""" + a.finish() + """
.section .rodata,"a"
.p2align 6
.amdhsa_kernel r_kernel
  .amdhsa_next_free_vgpr 64
  .amdhsa_next_free_sgpr 16
  .amdhsa_accum_offset 64
  .amdhsa_group_segment_fixed_size 0
  .amdhsa_kernarg_size 80
  .amdhsa_user_sgpr_count 2
  .amdhsa_user_sgpr_kernarg_segment_ptr 1
  .amdhsa_system_sgpr_workgroup_id_x 1
.end_amdhsa_kernel
"""
RL = "; @launch kernel=r_kernel grid=(1,1,1) block=(1024,1,1) lds=4096"
```

```python
import sys
sys.path.insert(0, "bench")
from build import build
import gen2, report
KN = gen2.KN
P = {0:3, 16:2, 32:1, 48:0}
txt, n, nops = gen2.gen(prio=P, pflags="nt", diag=True)
L = "; @launch grid=(256,1,1) block=(1024,1,1) lds=33280"
M = f"; @launch kernel={KN} grid=(256,1,1) block=(1024,1,1) lds=33280"
for name, lines in {"r_m": [M, report.RL], "r_mm": [M, M, report.RL]}.items():
    t = txt.replace(L, "\n".join(lines)) + report.report_kernel()
    p = f"bench/{name}.s"
    open(p, "w").write(t)
    print(build(p))
```

```python
from asmlib import Asm
def report_kernel(nwaves=4096, nst=9, spin=None):
    a = Asm()
    a("s_cmp_ge_u32 s2, 1\ns_cbranch_scc1 R_end")
    a("s_load_dwordx2 s[8:9], s[0:1], 72\ns_load_dwordx2 s[12:13], s[0:1], 64")
    a("s_mov_b32 s10, 0x400000\ns_mov_b32 s11, 0x20000\ns_mov_b32 s14, 256\ns_mov_b32 s15, 0x20000")
    a("v_lshlrev_b32 v1, 2, v0\nv_bfe_u32 v2, v0, 4, 2\nv_cmp_eq_u32 vcc, 1, v2\nv_mov_b32 v3, 0\nv_mov_b32 v4, -1\nv_cndmask_b32 v3, v3, v4, vcc")
    a("ds_write_b32 v1, v3")
    a("v_lshlrev_b32 v5, 6, v0\ns_mov_b32 s4, 0x200000\nv_mov_b32 v6, 0\nv_mov_b32 v7, 1")
    a("s_waitcnt lgkmcnt(0)\ns_barrier")
    per = nwaves // 1024
    for r in range(per):
        a(f"s_add_u32 s5, s4, {r*65536}")
        for k in range(3):
            a(f"buffer_load_dwordx4 v[{16+r*12+4*k}:{19+r*12+4*k}], v5, s[8:11], s5 offen offset:{16*k} sc1")
    a("s_waitcnt vmcnt(0)")
    for r in range(per):
        a(f"ds_min_u32 v6, v{16+r*12} offset:64")
    a("s_waitcnt lgkmcnt(0)\ns_barrier")
    a("ds_read_b32 v8, v6 offset:64\ns_waitcnt lgkmcnt(0)\ns_barrier")
    for r in range(per):
        for k in range(nst):
            v = 16 + r * 12 + k
            a(f"v_cmp_ne_u32 vcc, 0, v{v}\nv_sub_u32 v{v}, v{v}, v8")
            a(f"s_and_saveexec_b64 s[6:7], vcc")
            a(f"ds_max_u32 v6, v{v} offset:{4*k}")
            if k: a(f"ds_min_u32 v6, v{v} offset:{64+4*k}")
            a(f"ds_add_u32 v6, v{v} offset:{128+4*k}\nds_add_u32 v6, v7 offset:{192+4*k}")
            a("s_mov_b64 exec, s[6:7]")
    a("s_waitcnt lgkmcnt(0)\ns_barrier")
    a("v_cmp_gt_u32 vcc, 16, v0\ns_and_saveexec_b64 s[6:7], vcc\ns_cbranch_execz R_end")
    a("ds_read_b32 v9, v1\nds_read_b32 v10, v1 offset:64\nds_read_b32 v11, v1 offset:128\nds_read_b32 v12, v1 offset:192\ns_waitcnt lgkmcnt(0)")
    a("v_cvt_f32_u32 v11, v11\nv_cvt_f32_u32 v12, v12\nv_rcp_f32 v12, v12\nv_mul_f32 v11, v11, v12\nv_cvt_u32_f32 v11, v11")
    if spin is not None:
        k, kind = spin
        a(f"v_readlane_b32 s20, v{9 if kind == 'max' else 11}, {k}")
        a("s_min_u32 s20, s20, 20000\ns_mul_i32 s20, s20, 10\ns_memrealtime s[22:23]\ns_waitcnt lgkmcnt(0)")
        a("R_spin:\ns_memrealtime s[24:25]\ns_waitcnt lgkmcnt(0)\ns_sub_u32 s26, s24, s22\ns_cmp_lt_u32 s26, s20\ns_cbranch_scc1 R_spin")
    a("v_mul_u32_u24 v11, 100000, v11\nv_add_u32 v9, v9, v11")
    a("buffer_store_dword v9, v1, s[12:15], 0 offen")
    a("R_end:\ns_endpgm")
    return """
.text
.globl r_kernel
.p2align 8
.type r_kernel,@function
r_kernel:
""" + a.finish() + """
.section .rodata,"a"
.p2align 6
.amdhsa_kernel r_kernel
  .amdhsa_next_free_vgpr 64
  .amdhsa_next_free_sgpr 32
  .amdhsa_accum_offset 64
  .amdhsa_group_segment_fixed_size 0
  .amdhsa_kernarg_size 80
  .amdhsa_user_sgpr_count 2
  .amdhsa_user_sgpr_kernarg_segment_ptr 1
  .amdhsa_system_sgpr_workgroup_id_x 1
.end_amdhsa_kernel
"""
RL = "; @launch kernel=r_kernel grid=(1,1,1) block=(1024,1,1) lds=4096"
```

```python
import sys
sys.path.insert(0, "bench")
from build import build
import gen2, report
KN = gen2.KN
P = {0:3, 16:2, 32:1, 48:0}
txt, n, nops = gen2.gen(prio=P, pflags="nt", diag=True)
L = "; @launch grid=(256,1,1) block=(1024,1,1) lds=33280"
M = f"; @launch kernel={KN} grid=(256,1,1) block=(1024,1,1) lds=33280"
for name, sp in {"sp_none": None, "sp_endmax": (8,"max"), "sp_kargmax": (1,"max"), "sp_paramavg": (2,"avg"), "sp_vdoneavg": (4,"avg"), "sp_b2max": (5,"max")}.items():
    t = txt.replace(L, "\n".join([M, report.RL])) + report.report_kernel(spin=sp)
    p = f"bench/{name}.s"
    open(p, "w").write(t)
    print(build(p))
```

```python
import re

TRANS = ("v_exp_f32", "v_log_f32", "v_rcp_f32", "v_rsq_f32", "v_sqrt_f32", "v_sin_f32", "v_cos_f32")

def regs_of(tok):
    tok = tok.strip()
    tok = tok.lstrip("-")
    if tok.startswith("abs(") or tok.startswith("|"):
        tok = tok.strip("|").replace("abs(", "").rstrip(")")
    m = re.fullmatch(r"([vsa])(\d+)", tok)
    if m: return [(m.group(1), int(m.group(2)))]
    m = re.fullmatch(r"([vsa])\[(\d+):(\d+)\]", tok)
    if m: return [(m.group(1), i) for i in range(int(m.group(2)), int(m.group(3)) + 1)]
    if tok == "vcc": return [("s", 106), ("s", 107)]
    if tok == "exec": return [("s", 126), ("s", 127)]
    if tok == "m0": return [("s", 124)]
    return []

class Ins:
    def __init__(self, text):
        self.text = text
        t = text.split(";")[0].strip()
        self.label = t.endswith(":")
        parts = t.split(None, 1)
        self.op = parts[0] if parts else ""
        rest = parts[1] if len(parts) > 1 else ""
        ops = []; cur = ""; depth = 0
        for ch in rest:
            if ch == "[": depth += 1
            if ch == "]": depth -= 1
            if ch == "," and depth == 0:
                ops.append(cur.strip()); cur = ""
            else: cur += ch
        if cur.strip(): ops.append(cur.strip())
        self.mods = ""
        if ops:
            sp = ops[-1].split(None, 1)
            ops[-1] = sp[0]
            self.mods = sp[1] if len(sp) > 1 else ""
        self.ops = ops
        op = self.op
        self.mfma = op.startswith("v_mfma")
        self.valu = op.startswith("v_") and not self.mfma
        self.dot = op.startswith("v_dot")
        self.trans = any(op.startswith(x) for x in TRANS)
        self.dpp = op.endswith("_dpp")
        self.perm = op.startswith("v_permlane")
        self.rdl = op.startswith("v_readlane") or op.startswith("v_readfirstlane")
        self.vmem = op.startswith("buffer_") or op.startswith("global_")
        self.ds = op.startswith("ds_")
        self.salu = op.startswith("s_")
        self.store = (self.vmem and ("store" in op or "atomic" in op))
        self.wr = []; self.rd = []
        self.srcs = []
        allr = [regs_of(o) for o in ops]
        if self.mfma:
            self.wr = allr[0]; self.A = allr[1]; self.B = allr[2]; self.C = allr[3]
            self.rd = self.A + self.B + self.C
            if "4x4x4" in op: self.passes = 2
            elif "16x16x16" in op or "16x16x32" in op: self.passes = 4
            elif "32x32x16" in op or "32x32x8" in op: self.passes = 8
            else: raise ValueError(op)
        elif self.perm:
            self.wr = allr[0] + allr[1]; self.rd = allr[0] + allr[1]
        elif self.valu:
            self.wr = list(allr[0])
            k = 1
            if op.startswith("v_add_co") or op.startswith("v_addc_co") or op.startswith("v_sub_co"):
                self.wr += allr[1]; k = 2
            self.srcs = allr[k:]
            for r in allr[k:]: self.rd += r
            if op.startswith("v_fmac") or op.startswith("v_dot2c") or (self.dpp and "bank_mask:0xf" not in self.mods):
                self.rd += allr[0]
            if op.startswith("v_cndmask") and len(ops) == 3: self.rd += regs_of("vcc")
        elif self.vmem:
            if "lds" in self.mods.split():
                for r in allr: self.rd += r
                self.rd += regs_of("m0")
            elif "load" in op:
                self.wr = allr[0]
                for r in allr[1:]: self.rd += r
            elif "atomic" in op:
                for r in allr: self.rd += r
                if "sc0" in self.mods.split(): self.wr = allr[0]
            else:
                for r in allr: self.rd += r
            self.data = []
            if "store" in op:
                self.data = allr[0] if op.startswith("buffer_") else allr[1]
        elif self.ds:
            if op.startswith("ds_read") or op.startswith("ds_bpermute") or op.startswith("ds_swizzle") or "rtn" in op:
                self.wr = allr[0]
                for r in allr[1:]: self.rd += r
            else:
                for r in allr: self.rd += r
        elif self.salu:
            if op.startswith("s_cmp") or op.startswith("s_cbranch") or op in ("s_waitcnt", "s_nop", "s_barrier", "s_endpgm", "s_branch", "s_setprio", "s_sleep", "s_setpc_b64"):
                for r in allr: self.rd += r
            else:
                if allr: self.wr = allr[0]
                for r in allr[1:]: self.rd += r
                if "saveexec" in op: self.wr = self.wr + regs_of("exec")
        if op.startswith("buffer_"):
            m = re.search(r"offset:(\d+)", self.mods)
            assert not m or int(m.group(1)) < 4096, text
        if self.ds:
            m = re.search(r"offset:(\d+)", self.mods)
            assert not m or int(m.group(1)) < 65536, text
        self.states = 1
        if op == "s_nop": self.states = int(ops[0], 0) + 1
        if self.label or op == "": self.states = 0

def ov(a, b):
    return bool(set(a) & set(b))

def need(p, c):
    n = 0
    pv = [r for r in p.wr if r[0] in "va"]
    ps = [r for r in p.wr if r[0] == "s"]
    if p.valu:
        if c.dpp and c.srcs and ov(pv, c.srcs[0]): n = max(n, 2)
        if c.dpp and ov(pv, c.rd): n = max(n, 2)
        if c.perm and ov(pv, c.rd): n = max(n, 2)
        if c.rdl and ov(pv, c.rd): n = max(n, 1)
        if p.trans and (c.valu or c.mfma) and not c.trans and ov(pv, c.rd + c.wr): n = max(n, 1)
        if p.trans and (c.vmem or c.ds) and ov(pv, c.rd): n = max(n, 1)
        if c.mfma and ov(pv, c.rd): n = max(n, 2)
        if p.dot:
            if c.dot and c.op == p.op:
                ab = (c.srcs[0] + c.srcs[1])
                if ov(pv, ab): n = max(n, 3)
            elif ov(pv, c.rd + c.wr): n = max(n, 3)
        if ps:
            if c.vmem and ov(ps, c.rd): n = max(n, 5)
            if c.valu and ov(ps, c.rd): n = max(n, 4 if c.rdl or c.op.startswith("v_writelane") else 2)
            if c.salu and ov(ps, c.rd): n = max(n, 2)
            if ov(ps, regs_of("exec")): n = max(n, 5)
    if p.mfma:
        tab = {2: (2, 4, 5, 5, 1), 4: (0, 6, 8, 8, 3), 8: (0, 10, 12, 12, 7)}[p.passes]
        if c.mfma:
            if ov(pv, c.C):
                n = max(n, tab[0] if (c.C == p.wr and c.passes == p.passes) else tab[1])
            if ov(pv, c.A + c.B): n = max(n, tab[2])
            if ov(pv, c.wr) and not ov(pv, c.C): n = max(n, tab[1])
        elif (c.valu or c.vmem or c.ds) and ov(pv, c.rd + c.wr): n = max(n, tab[3])
        if c.valu and ov(p.C, c.wr): n = max(n, tab[4])
        if (c.vmem or c.ds) and ov(p.C, c.wr): n = max(n, tab[4])
    if p.vmem and p.store and len(getattr(p, "data", [])) >= 3:
        if ov(p.data, c.wr): n = max(n, 2)
    if p.ds and not p.wr and len(p.rd) >= 4 and ov([r for r in p.rd if r[0] == 'v'], c.wr): n = max(n, 1)
    if p.salu and ov(ps, regs_of("m0")) and c.vmem and "lds" in c.mods.split(): n = max(n, 1)
    return n

class Asm:
    def __init__(self):
        self.ins = []
        self.vm = []
        self.vmid = 0
    def __call__(self, text):
        for line in text.split("\n"):
            line = line.strip()
            if not line: continue
            self.ins.append(Ins(line))
    def vmem(self, text):
        self(text)
        self.vmid += 1
        self.vm.append(self.vmid)
        return self.vmid
    def wait_vm(self, opid):
        if opid not in self.vm: return
        k = self.vm.index(opid)
        n = len(self.vm) - 1 - k
        assert n <= 63
        self(f"s_waitcnt vmcnt({n})")
        self.vm = self.vm[k + 1:]
    def wait_vm_all(self):
        self("s_waitcnt vmcnt(0)")
        self.vm = []
    def finish(self):
        out = []
        nn = 0
        for c in self.ins:
            req = 0
            dist = 0
            for p in reversed(out):
                if dist >= 20: break
                r = need(p, c) if not (p.label or c.label) else 0
                if r - dist > req: req = r - dist
                dist += p.states
            if req > 0:
                out.append(Ins(f"s_nop {req-1}")); nn += req
            out.append(c)
        self.nops = nn
        return "\n".join(("" if i.label else "    ") + i.text for i in out)
```

```python
import sys
from asmlib import Asm
KN = "standalone__kv_cache_quant_int4_int2_kv_with_per_channel_or_per_token_scales__decode_kernel"
HDR = open("standalone__kv_cache_quant_int4_int2_kv_with_per_channel_or_per_token_scales__decode.s.ref").read().split("; Override launch")[0]

def gen(NSG=12, lead=12, jbits=(9,10), gbits=(12,13), wbits=(11,14),
        splitb=(0,1,2), flags="nt", pflags="nt", qflags="", diag=False, notail=False, oflags="",
        cgap=5, steal=True, noclear=False, pre=8, flag_it=None):
    NW = 4
    a = Asm()
    LIM = 4 * (16 - NSG)
    R0 = 16 - lead
    C0 = (R0 - cgap) % 16
    cwrap = 1 if C0 > R0 or (C0 == R0) else 0
    if flag_it is None: flag_it = NSG - 4
    PITCH = 272
    WSCR = 16 * PITCH
    LDS_ML = NW * WSCR
    LDS_P = LDS_ML + 512
    LDS_SZ = LDS_P + 12288
    CNTOFF = 0x100000
    WS_SZ = 0x400000 if diag else 0x120000
    OOB = 0x8000000
    SK, SV, SQ, SKS, SKZ, SVS, SVZ, SOUT, SDBG, SWS = 8, 12, 16, 20, 24, 28, 32, 36, 40, 44
    sW, sBH, sSplit, sT, sT2, sOff = 3, 48, 49, 50, 51, 52
    sLog2e, sScale, sMask = 53, 54, 55
    sCur, sNx, sMode, sIter, sReg, sBHB = 56, 57, 58, 59, 60, 61
    sPK, sPV = 62, 63
    sA = 4; sB = 6
    X = 96 if diag else 64
    sFl, sFo, sCnt, sVic, sBest = X, X + 1, X + 2, X + 3, X + 4
    NSGPR = X + 6
    sRegQ = 2
    assert max(jbits) < 12
    vOff, vLane, vWr, vPk, vPv, vMk0, vMk1, vRd = 1, 2, 3, 4, 5, 6, 7, 8
    vPa, vPb = 9, 12
    vM, vL = 10, 11
    vVz, vVsH = 13, 14
    vL16 = 15
    RAW = 16
    Q = 28; NZ = 44; KS = 52; ACC = 60
    T = list(range(68, 92))
    AO = 92; VB = 108; RING = 124
    NV = RING + 64

    a(f"s_cmp_ge_u32 s2, 256\ns_cbranch_scc1 L_exit")
    def stamp(k):
        if diag:
            a(f"s_memrealtime s[{64+2*k}:{65+2*k}]\ns_waitcnt lgkmcnt(0)")
    if diag:
        for k in range(64, 96): a(f"s_mov_b32 s{k}, 0")
    stamp(0)
    for srd, off in ((SWS, 72), (SKS, 24), (SKZ, 32), (SVS, 40), (SVZ, 48), (SK, 8), (SV, 16), (SQ, 0), (SDBG, 64), (SOUT, 56)):
        a(f"s_load_dwordx2 s[{srd}:{srd+1}], s[0:1], {off}")
    a(f"v_lshrrev_b32 v{T[0]}, 6, v0")
    a(f"v_and_b32 v{vLane}, 63, v0")
    a(f"v_readfirstlane_b32 s{sW}, v{T[0]}")
    for srd, sz in ((SK, 0x8000000), (SV, 0x8000000), (SQ, 32768), (SKS, 0x100000), (SKZ, 0x100000), (SVS, 0x80000), (SVZ, 0x80000), (SOUT, 32768), (SDBG, 256), (SWS, WS_SZ)):
        a(f"s_mov_b32 s{srd+2}, {sz}\ns_mov_b32 s{srd+3}, 0x20000")
    if tuple(splitb) == (0, 1, 2):
        a(f"s_and_b32 s{sSplit}, s2, 7\ns_lshr_b32 s{sBH}, s2, 3")
    else:
        a(f"s_mov_b32 s{sSplit}, 0\ns_mov_b32 s{sBH}, 0")
        for k, i in enumerate(splitb):
            a(f"s_bfe_u32 s{sT}, s2, {i | (1 << 16)}\ns_lshl_b32 s{sT}, s{sT}, {k}\ns_or_b32 s{sSplit}, s{sSplit}, s{sT}")
        for k, i in enumerate([i for i in range(8) if i not in splitb]):
            a(f"s_bfe_u32 s{sT}, s2, {i | (1 << 16)}\ns_lshl_b32 s{sT}, s{sT}, {k}\ns_or_b32 s{sBH}, s{sBH}, s{sT}")
    a(f"s_lshl_b32 s{sBHB}, s{sBH}, 22")
    a(f"s_lshl_b32 s{sReg}, s{sSplit}, 19\ns_or_b32 s{sReg}, s{sReg}, s{sBHB}")
    if diag: a("s_mov_b32 s95, s2")
    def qbits(dst, q, base):
        a(f"s_and_b32 s{sT2}, s{q}, 1\ns_lshl_b32 s{sT2}, s{sT2}, {wbits[0]}\ns_or_b32 s{dst}, s{base}, s{sT2}")
        a(f"s_bfe_u32 s{sT2}, s{q}, {1 | (1 << 16)}\ns_lshl_b32 s{sT2}, s{sT2}, {wbits[1]}\ns_or_b32 s{dst}, s{dst}, s{sT2}")
    qbits(sRegQ, sW, sReg)
    a(f"s_mov_b32 s{sCur}, s{sRegQ}\ns_mov_b32 s{sNx}, s{sRegQ}\ns_mov_b32 s{sVic}, s{sSplit}")
    c_, gg = T[1], T[4]
    a(f"v_and_b32 v{c_}, 15, v{vLane}\nv_lshrrev_b32 v{gg}, 4, v{vLane}")
    a(f"v_mov_b32 v{T[2]}, 0")
    for lb, ab in ((4, gbits[0]), (5, gbits[1])):
        a(f"v_bfe_u32 v{T[3]}, v0, {lb}, 1\nv_lshl_or_b32 v{T[2]}, v{T[3]}, {ab}, v{T[2]}")
    a(f"v_lshl_or_b32 v{vOff}, v{c_}, 4, v{T[2]}")
    a(f"v_lshrrev_b32 v{vPv}, 8, v{T[2]}")
    for lb, ab in ((0, jbits[0]), (1, jbits[1])):
        a(f"v_bfe_u32 v{T[3]}, v0, {lb}, 1\nv_lshl_or_b32 v{vPv}, v{T[3]}, {ab-8}, v{vPv}")
    a(f"v_lshlrev_b32 v{vPk}, 3, v{c_}")
    a(f"v_lshlrev_b32 v{vL16}, 4, v{vLane}")
    a(f"s_mul_i32 s{sT2}, s{sW}, {WSCR}")
    a(f"v_mul_u32_u24 v{vWr}, {4*PITCH}, v{gg}\nv_add3_u32 v{vWr}, v{vWr}, v{vPk}, s{sT2}")
    a(f"v_mul_u32_u24 v{vRd}, {PITCH}, v{c_}\nv_lshl_add_u32 v{vRd}, v{gg}, 4, v{vRd}\nv_add_u32 v{vRd}, s{sT2}, v{vRd}")
    pq = T[5]
    a(f"v_bfe_u32 v{pq}, v{vLane}, 2, 2\nv_lshlrev_b32 v{pq}, 8, v{pq}\nv_lshl_or_b32 v{pq}, v{gg}, 4, v{pq}")
    a(f"s_mov_b32 s{sLog2e}, 0x3fb8aa3b\ns_mov_b32 s{sScale}, 0x3db504f3\ns_mov_b32 s{sMask}, 0xffff0000")
    a(f"s_mov_b32 s{sMode}, 0\ns_mov_b32 s{sIter}, 0\ns_mov_b32 s{sFl}, 0\ns_lshl_b32 s{sFo}, s{sBH}, 3")
    a(f"s_lshl_b32 s{sOff}, s{sBH}, 10")
    a(f"s_lshl_b32 s{sCnt}, s{sBH}, 12\ns_add_u32 s{sCnt}, s{sCnt}, {CNTOFF}")
    a(f"s_lshl_b32 s{sA}, s{sSplit}, 12\ns_lshl_b32 s{sT}, s{sBH}, 15\ns_add_u32 s{sA}, s{sA}, s{sT}")
    a(f"s_cmp_eq_u32 s{sSplit}, 0\ns_cselect_b32 s{sT2}, 0, -1\ns_cselect_b32 s{sA}, s{sCnt}, s{sA}\ns_cselect_b32 s{sA+1}, 0x10000, 1")
    a(f"s_lshl_b32 s{sT}, s{sW}, 10\ns_add_u32 s{sA}, s{sA}, s{sT}")
    a(f"s_lshr_b32 s{sT}, s{sBH}, 1\ns_lshl_b32 s{sT}, s{sT}, 8\ns_add_u32 s{sCnt}, s{sCnt}, s{sT}")
    for k in range(4): a(f"v_mov_b32 v{AO+k}, s{sT2}")
    a(f"s_lshl_b32 s{sT2}, s{sW}, 10")
    a(f"s_lshr_b32 s{sPK}, s{sReg}, 7\ns_add_u32 s{sPK}, s{sPK}, s{sT2}")
    a(f"s_lshr_b32 s{sPV}, s{sReg}, 8\ns_lshl_b32 s{sT}, s{sW}, 9\ns_add_u32 s{sPV}, s{sPV}, s{sT}")
    a(f"s_add_u32 s{sB}, s{sT2}, {LDS_P}\ns_add_u32 s{sB+1}, s{sT}, {LDS_P + 8192}")
    a(f"s_mov_b32 m0, s{sB}")
    a("s_waitcnt lgkmcnt(0)")
    stamp(1)

    def ioff(i):
        hs, j = i & 1, i >> 1
        return (hs << 8) | ((j & 1) << jbits[0]) | ((j >> 1) << jbits[1])
    def RG(p, k): return RING + 4 * p + k
    ops = {}
    def global_params():
        a(f"s_lshr_b32 s{sPK}, s{sNx}, 15\ns_lshl_b32 s{sPK}, s{sPK}, 8\ns_lshr_b32 s{sPV}, s{sNx}, 8")
        a(f"buffer_load_dwordx2 v[{RAW}:{RAW+1}], v{vPk}, s[{SKS}:{SKS+3}], s{sPK} offen {pflags}")
        a(f"buffer_load_dwordx2 v[{RAW+2}:{RAW+3}], v{vPk}, s[{SKS}:{SKS+3}], s{sPK} offen offset:128 {pflags}")
        a(f"buffer_load_dwordx2 v[{RAW+4}:{RAW+5}], v{vPk}, s[{SKZ}:{SKZ+3}], s{sPK} offen {pflags}")
        a(f"buffer_load_dwordx2 v[{RAW+6}:{RAW+7}], v{vPk}, s[{SKZ}:{SKZ+3}], s{sPK} offen offset:128 {pflags}")
        a(f"buffer_load_ushort v{RAW+8}, v{vPv}, s[{SVS}:{SVS+3}], s{sPV} offen {pflags}")
        a(f"buffer_load_ushort v{RAW+9}, v{vPv}, s[{SVZ}:{SVZ+3}], s{sPV} offen {pflags}")
    def lds_params():
        a(f"s_bfe_u32 s{sT}, s{sNx}, {15 | (4 << 16)}\ns_lshl_b32 s{sPK}, s{sT}, 8\ns_bfe_u32 s{sPV}, s{sNx}, {8 | (11 << 16)}")
        a(f"v_add_u32 v{vPa}, s{sPK}, v{vPk}\nv_add_u32 v{vPb}, s{sPV}, v{vPv}")
        a(f"ds_read_b64 v[{RAW}:{RAW+1}], v{vPa} offset:{LDS_P}")
        a(f"ds_read_b64 v[{RAW+2}:{RAW+3}], v{vPa} offset:{LDS_P+128}")
        a(f"ds_read_b64 v[{RAW+4}:{RAW+5}], v{vPa} offset:{LDS_P+4096}")
        a(f"ds_read_b64 v[{RAW+6}:{RAW+7}], v{vPa} offset:{LDS_P+4096+128}")
        a(f"ds_read_u16 v{RAW+8}, v{vPb} offset:{LDS_P+8192}")
        a(f"ds_read_u16 v{RAW+9}, v{vPb} offset:{LDS_P+10240}")
    def issue(pp):
        p = pp % 16
        srd = SK if p < 8 else SV
        sb = sCur if pp < 16 else sNx
        ops[p] = a.vmem(f"buffer_load_dwordx4 v[{RG(p,0)}:{RG(p,3)}], v{vOff}, s[{srd}:{srd+3}], s{sb} offen offset:{ioff(p & 7)} {flags}")
    if not noclear:
        a(f"buffer_store_dwordx4 v[{AO}:{AO+3}], v{vL16}, s[{SWS}:{SWS+3}], s{sA} offen sc1")
    a(f"buffer_load_dwordx4 v{vL16}, s[{SKS}:{SKS+3}], s{sPK} offen {pflags} lds")
    a(f"s_add_u32 m0, s{sB}, 4096")
    a(f"buffer_load_dwordx4 v{vL16}, s[{SKZ}:{SKZ+3}], s{sPK} offen {pflags} lds")
    a(f"s_mov_b32 exec_hi, 0\ns_mov_b32 m0, s{sB+1}")
    a(f"buffer_load_dwordx4 v{vL16}, s[{SVS}:{SVS+3}], s{sPV} offen {pflags} lds")
    a(f"s_add_u32 m0, s{sB+1}, 2048")
    a(f"buffer_load_dwordx4 v{vL16}, s[{SVZ}:{SVZ+3}], s{sPV} offen {pflags} lds")
    a("s_mov_b64 exec, -1")
    for s in range(4):
        a(f"buffer_load_dwordx4 v[{Q+4*s}:{Q+4*s+3}], v{pq}, s[{SQ}:{SQ+3}], s{sOff} offen offset:{64*s} {qflags}")
    pre = min(pre, lead)
    for p in range(pre): issue(p)
    a(f"v_and_b32 v{T[6]}, 1, v{vLane}\nv_lshlrev_b32 v{T[6]}, 4, v{T[6]}")
    a(f"v_mov_b32 v{T[7]}, 0xffff\nv_lshlrev_b32 v{T[7]}, v{T[6]}, v{T[7]}")
    a(f"v_bfe_i32 v{T[6]}, v{vLane}, 1, 1")
    a(f"v_and_b32 v{vMk1}, v{T[6]}, v{T[7]}\nv_xor_b32 v{vMk0}, v{vMk1}, v{T[7]}")
    a(f"v_mov_b32 v{vM}, 0xf149f2ca\nv_mov_b32 v{vL}, 0")
    for k in range(8): a(f"v_mov_b32 v{ACC+k}, 0")
    if diag == 3:
        a(f"s_waitcnt vmcnt({8 + pre})"); stamp(9)
        a(f"s_waitcnt vmcnt({4 + pre})"); stamp(10)
    a(f"s_waitcnt vmcnt({4 + pre})\ns_barrier")
    if diag == 3:
        stamp(11)
    lds_params()
    for p in range(pre, lead): issue(p)
    a("s_waitcnt lgkmcnt(0)")
    a(f"s_cmp_lg_u32 s{sW}, 0\ns_cbranch_scc1 L_loop")
    a(f"s_atomic_add s{sA+1}, s[{SDBG}:{SDBG+1}], s{sFo}")
    names = {v: k for k, v in ops.items()}
    top_names = [names[x] for x in a.vm]

    def resolve():
        a(f"s_add_u32 s{sT2}, s{sIter}, 1")
        a(f"s_cmp_ge_u32 s{sT2}, {NSG}\ns_cbranch_scc1 L_rdyn")
        a(f"s_lshl_b32 s{sNx}, s{sT2}, 15\ns_or_b32 s{sNx}, s{sNx}, s{sRegQ}")
        a("s_branch L_own")
        a("L_rdyn:")
        a(f"s_mov_b32 s{sNx}, {OOB}")
        if LIM:
            a(f"s_cmp_lg_u32 s{sMode}, 1\ns_cbranch_scc1 L_pdone")
            a("L_resolve:")
            a("s_waitcnt lgkmcnt(0)")
            a(f"s_lshl_b32 s{sT2}, s{sVic}, 3\ns_lshr_b64 s[{sB}:{sB+1}], s[{sA}:{sA+1}], s{sT2}\ns_and_b32 s{sT}, s{sB}, 0xff")
            a(f"s_cmp_ge_u32 s{sT}, {LIM}\ns_cbranch_scc1 L_pick")
            a(f"s_lshr_b32 s{sNx}, s{sT}, 2\ns_add_u32 s{sNx}, s{sNx}, {NSG}\ns_lshl_b32 s{sNx}, s{sNx}, 15\ns_lshl_b32 s{sOff}, s{sVic}, 19\ns_or_b32 s{sNx}, s{sNx}, s{sOff}\ns_or_b32 s{sNx}, s{sNx}, s{sBHB}")
            qbits(sNx, sT, sNx)
            if diag:
                a(f"s_cmp_lg_u32 s{sVic}, s{sSplit}\ns_addc_u32 s92, s92, 0")
            a(f"s_cmp_lg_u32 s{sVic}, s{sSplit}\ns_cbranch_scc1 L_pick")
            a(f"s_cmp_lt_u32 s{sT}, {LIM-1}\ns_cbranch_scc1 L_own")
            a("L_pick:")
            if steal:
                a(f"s_lshl_b32 s{sT2}, s{sVic}, 3\ns_lshl_b64 s[{sB}:{sB+1}], 1, s{sT2}\ns_add_u32 s{sA}, s{sA}, s{sB}\ns_addc_u32 s{sA+1}, s{sA+1}, s{sB+1}")
                a(f"s_lshl_b32 s{sT2}, s{sSplit}, 3\ns_lshr_b64 s[{sB}:{sB+1}], s[{sA}:{sA+1}], s{sT2}")
                a(f"s_sub_u32 s{sT2}, 64, s{sT2}\ns_lshl_b64 s[{sA}:{sA+1}], s[{sA}:{sA+1}], s{sT2}\ns_or_b64 s[{sA}:{sA+1}], s[{sA}:{sA+1}], s[{sB}:{sB+1}]")
                a(f"s_mov_b32 s{sBest}, {LIM}\ns_mov_b32 s{sVic}, 0")
                for i in range(1, 8):
                    a(f"s_bfe_u32 s{sT}, s{sA + (i >> 2)}, {(8 * (i & 3)) | (8 << 16)}\ns_cmp_lt_u32 s{sT}, s{sBest}\ns_cselect_b32 s{sBest}, s{sT}, s{sBest}\ns_cselect_b32 s{sVic}, {i}, s{sVic}")
                a(f"s_cmp_eq_u32 s{sVic}, 0\ns_cselect_b32 s{sMode}, 2, 1\ns_cbranch_scc1 L_have")
                a(f"s_add_u32 s{sVic}, s{sVic}, s{sSplit}\ns_and_b32 s{sVic}, s{sVic}, 7")
                a(f"s_cmp_lt_u32 s{sNx}, {OOB}\ns_cbranch_scc1 L_have")
                a(f"s_lshl_b32 s{sT2}, s{sVic}, 3\ns_lshl_b64 s[{sA}:{sA+1}], 1, s{sT2}")
                a(f"s_atomic_add_x2 s[{sA}:{sA+1}], s[{SWS}:{SWS+1}], s{sCnt} glc")
                a("s_branch L_resolve")
            else:
                a(f"s_mov_b32 s{sMode}, 2")
            a("L_have:")
            a(f"s_xor_b32 s{sT}, s{sNx}, s{sReg}\ns_cmp_lt_u32 s{sT}, {1 << 19}\ns_cbranch_scc1 L_own")
            a(f"s_cmp_ge_u32 s{sNx}, {OOB}\ns_cbranch_scc1 L_pdone")
            global_params()
        a("s_branch L_pdone")
        a("L_own:")
        lds_params()
        a("L_pdone:")
    def claim():
        a(f"s_cmp_lg_u32 s{sIter}, {flag_it}\ns_cbranch_scc1 L_nofl")
        a(f"s_load_dword s{sFl}, s[{SDBG}:{SDBG+1}], s{sFo}")
        a("L_nofl:")
        if LIM:
            a(f"s_cmp_lt_u32 s{sIter}, {NSG - 1 - cwrap}\ns_cbranch_scc1 L_claimed")
            a(f"s_cmp_eq_u32 s{sMode}, 2\ns_cbranch_scc1 L_claimed")
            a("L_rdy:")
            a(f"s_cmp_ge_u32 s{sFl}, 0x10000\ns_cbranch_scc1 L_claim")
            a(f"s_mov_b32 s{sFl}, 0\ns_atomic_add s{sFl}, s[{SDBG}:{SDBG+1}], s{sFo} glc\ns_waitcnt lgkmcnt(0)\ns_branch L_rdy")
            a("L_claim:")
            a(f"s_mov_b32 s{sMode}, 1\ns_lshl_b32 s{sT2}, s{sVic}, 3\ns_lshl_b64 s[{sA}:{sA+1}], 1, s{sT2}")
            a(f"s_atomic_add_x2 s[{sA}:{sA+1}], s[{SWS}:{SWS+1}], s{sCnt} glc")
            a("L_claimed:")
    def hooks(p):
        if p == R0: resolve()
        if p == C0: claim()
    assert flag_it < NSG - 1 - cwrap
    a("L_loop:")
    cur = dict(ops)
    def wait_pos(p):
        a.wait_vm(cur[p] if p < lead else ops[p])
    wait_pos(0)
    if R0 > 8: a("s_waitcnt lgkmcnt(0)")
    if diag:
        for kk, it in (((2, 0), (7, 1), (8, 2), (9, 5), (10, 11)) if diag != 3 else ((2, 0), (7, 1), (8, 2))):
            a(f"s_cmp_lg_u32 s{sIter}, {it}\ns_cbranch_scc1 L_nost{kk}")
            stamp(kk)
            a(f"L_nost{kk}:")
    tp = [T[0], T[2], T[4], T[6]]
    D = [T[16], T[20]]
    def expand():
        for hs in range(2):
            for r in range(2):
                z = RAW + 4 + 2 * hs + r; s = RAW + 2 * hs + r
                a(f"v_lshlrev_b32 v{NZ+hs*4+2*r}, 16, v{z}\nv_and_b32 v{NZ+hs*4+2*r+1}, s{sMask}, v{z}")
                a(f"v_and_b32 v{KS+hs*4+2*r}, 0xffff, v{s}\nv_and_b32 v{KS+hs*4+2*r+1}, s{sMask}, v{s}")
        a(f"v_lshlrev_b32 v{vVz}, 16, v{RAW+9}\nv_lshlrev_b32 v{vVsH}, 16, v{RAW+8}")
    for i in range(8):
        hs, j = i & 1, i >> 1
        t = tp[i & 3]; d = D[i & 1]
        if i == 0 and R0 == 0: expand()
        hooks(i)
        wait_pos(i)
        if lead < 16: issue(i + lead)
        for k in range(4): a(f"v_cvt_f32_i32 v{d+k}, v{RG(i,k)}")
        if lead == 16: issue(i + lead)
        if i == 0 and R0 != 0: expand()
        for k in (0, 2):
            a(f"v_pk_add_f32 v[{d+k}:{d+k+1}], v[{d+k}:{d+k+1}], v[{NZ+hs*4+k}:{NZ+hs*4+k+1}] neg_lo:[0,1] neg_hi:[0,1]")
        for r in range(2):
            a(f"v_cvt_pk_bf16_f32 v{t+r}, v{d+2*r}, v{d+2*r+1}")
        for k in range(4):
            a(f"v_dot2_f32_bf16 v{d+k}, v{t+(k>>1)}, v{KS+hs*4+k}, 0")
        for r in range(2):
            a(f"v_cvt_pk_bf16_f32 v{t+r}, v{d+2*r}, v{d+2*r+1}")
        a(f"ds_write_b64 v{vWr}, v[{t}:{t+1}] offset:{j*PITCH + hs*128}")
    hooks(8)
    for s in range(4):
        a(f"ds_read_b128 v[{AO+4*s}:{AO+4*s+3}], v{vRd} offset:{64*s}")
    Z = T[8:12]; U = T[12:16]
    PZ = [T[0], T[2]]; PA = [T[12], T[14]]
    def v_deq(i):
        hs, j = i & 1, i >> 1
        b = j & 1; d = D[i & 1]; p = 8 + i
        if i: hooks(p)
        if hs == 0:
            a(f"v_mov_b32_dpp v{PZ[b]}, v{vVz} row_newbcast:{j} row_mask:0xf bank_mask:0xf")
        wait_pos(p)
        if lead < 16: issue(p + lead)
        for k in range(4): a(f"v_cvt_f32_i32 v{d+k}, v{RG(p,k)}")
        if lead == 16: issue(p + lead)
        for k in (0, 2):
            a(f"v_pk_add_f32 v[{d+k}:{d+k+1}], v[{d+k}:{d+k+1}], v[{PZ[b]}:{PZ[b]+1}] op_sel:[0,0] op_sel_hi:[1,0] neg_lo:[0,1] neg_hi:[0,1]")
        for r in range(2):
            a(f"v_cvt_pk_bf16_f32 v{VB+2*i+r}, v{d+2*r}, v{d+2*r+1}")
    def v_mma(i):
        hs, j = i & 1, i >> 1
        b = j & 1
        if hs == 0:
            a(f"v_and_b32 v{PA[b]}, v{vMk0}, v{Z[j]}\nv_and_b32 v{PA[b]+1}, v{vMk1}, v{Z[j]}")
        d = ACC + 4 * hs
        a(f"v_mfma_f32_16x16x16_bf16 v[{d}:{d+3}], v[{PA[b]}:{PA[b]+1}], v[{VB+2*i}:{VB+2*i+1}], v[{d}:{d+3}]")
    v_deq(0)
    for s in range(4):
        a(f"s_waitcnt lgkmcnt({3-s})")
        a(f"v_mfma_f32_16x16x32_bf16 v[{Z[0]}:{Z[3]}], v[{AO+4*s}:{AO+4*s+3}], v[{Q+4*s}:{Q+4*s+3}], " + ("0" if s == 0 else f"v[{Z[0]}:{Z[3]}]"))
    v_deq(1)
    for k in (0, 2):
        a(f"v_cvt_pk_bf16_f32 v{U[k]}, v{Z[k]}, v{Z[k+1]}")
    for k in (0, 2):
        a(f"v_lshlrev_b32 v{Z[k]}, 16, v{U[k]}\nv_and_b32 v{Z[k+1]}, s{sMask}, v{U[k]}")
    for k in range(4): a(f"v_mul_f32 v{Z[k]}, s{sScale}, v{Z[k]}")
    for k in (0, 2):
        a(f"v_cvt_pk_bf16_f32 v{U[k]}, v{Z[k]}, v{Z[k+1]}")
    for k in (0, 2):
        a(f"v_lshlrev_b32 v{Z[k]}, 16, v{U[k]}\nv_and_b32 v{Z[k+1]}, s{sMask}, v{U[k]}")
    mx, t0, f, fD = T[4], T[5], T[7], T[6]
    a(f"v_max3_f32 v{mx}, v{Z[0]}, v{Z[1]}, v{Z[2]}\nv_max_f32 v{mx}, v{mx}, v{Z[3]}")
    v_deq(2)
    for sw in ("v_permlane32_swap_b32", "v_permlane16_swap_b32"):
        a(f"v_mov_b32 v{t0}, v{mx}\n{sw} v{mx}, v{t0}\nv_max_f32 v{mx}, v{mx}, v{t0}")
    a(f"v_mul_f32 v{mx}, s{sLog2e}, v{mx}\nv_max_f32 v{mx}, v{mx}, v{vM}")
    a(f"v_sub_f32 v{f}, v{vM}, v{mx}\nv_mov_b32 v{vM}, v{mx}")
    for k in range(4): a(f"v_fma_f32 v{Z[k]}, v{Z[k]}, s{sLog2e}, -v{mx}")
    a(f"v_exp_f32 v{f}, v{f}")
    for k in range(4): a(f"v_exp_f32 v{Z[k]}, v{Z[k]}")
    v_deq(3)
    for h in range(4):
        a(f"v_mov_b32_dpp v{fD}, v{f} row_newbcast:{4*h} row_mask:{1<<h:#x} bank_mask:0xf")
    a(f"v_fma_f32 v{vL}, v{vL}, v{f}, v{Z[0]}")
    a(f"v_add_f32 v{t0}, v{Z[1]}, v{Z[2]}\nv_add_f32 v{vL}, v{vL}, v{Z[3]}\nv_add_f32 v{vL}, v{vL}, v{t0}")
    for k in range(4):
        a(f"v_mul_f32_dpp v{Z[k]}, v{vVsH}, v{Z[k]} row_newbcast:{k} row_mask:0xf bank_mask:0xf")
    for k in range(0, 8, 2):
        a(f"v_pk_mul_f32 v[{ACC+k}:{ACC+k+1}], v[{ACC+k}:{ACC+k+1}], v[{fD}:{fD+1}] op_sel:[0,0] op_sel_hi:[1,0]")
    for k in range(4): a(f"v_cvt_pk_bf16_f32 v{Z[k]}, v{Z[k]}, v{Z[k]}")
    v_deq(4)
    v_mma(0); v_mma(1); v_mma(2); v_mma(3)
    for i in range(4, 8):
        if i + 1 < 8: v_deq(i + 1)
        v_mma(i)
    names = {v: k for k, v in ops.items()}
    assert [names[x] for x in a.vm] == top_names, ([names[x] for x in a.vm], top_names)
    a(f"s_add_u32 s{sIter}, s{sIter}, 1")
    a(f"s_cmp_lt_u32 s{sNx}, {OOB}\ns_mov_b32 s{sCur}, s{sNx}\ns_cbranch_scc1 L_loop")
    a.vm = []
    stamp(3)
    vLds = T[8]
    a(f"v_and_b32 v{T[1]}, 15, v{vLane}\nv_lshrrev_b32 v{T[2]}, 4, v{vLane}")
    a(f"v_lshlrev_b32 v{vLds}, 4, v{T[1]}\nv_lshl_or_b32 v{vLds}, v{T[2]}, 9, v{vLds}")
    a(f"s_mul_i32 s{sT}, s{sW}, {WSCR}")
    a(f"v_add_u32 v{vLds}, s{sT}, v{vLds}")
    for sw in ("v_permlane32_swap_b32", "v_permlane16_swap_b32"):
        a(f"v_mov_b32 v{T[0]}, v{vL}\n{sw} v{vL}, v{T[0]}\nv_add_f32 v{vL}, v{vL}, v{T[0]}")
    a(f"ds_write_b128 v{vLds}, v[{ACC}:{ACC+3}]\nds_write_b128 v{vLds}, v[{ACC+4}:{ACC+7}] offset:256")
    a(f"v_lshlrev_b32 v{T[0]}, 3, v{vLane}")
    a(f"s_lshl_b32 s{sT}, s{sW}, 3\ns_add_u32 s{sT}, s{sT}, {LDS_ML}")
    a(f"v_add_u32 v{T[2]}, s{sT}, v{T[0]}")
    a("s_mov_b64 exec, 0x1111")
    a(f"ds_write_b64 v{T[2]}, v[{vM}:{vL}]")
    a("s_mov_b64 exec, -1")
    a(f"s_lshl_b32 s{sT}, s{sW}, 9")
    a(f"v_add_u32 v{T[1]}, s{sT}, v{T[0]}")
    a(f"s_lshl_b32 s{sT}, s{sW}, 5\ns_add_u32 s{sT}, s{sT}, {LDS_ML}")
    a(f"v_mov_b32 v{T[3]}, s{sT}")
    a(f"s_lshl_b32 s5, s{sBH}, 15\ns_lshl_b32 s{sT}, s{sW}, 10\ns_add_u32 s5, s5, s{sT}\ns_lshl_b32 s6, s{sSplit}, 12\ns_add_u32 s6, s6, s5")
    a(f"s_lshl_b32 s7, s{sBH}, 2\ns_add_u32 s7, s7, s{sW}\ns_lshl_b32 s{sOff}, s7, 8")
    a("s_waitcnt lgkmcnt(0)\ns_barrier")
    stamp(4)
    if notail: a("s_branch L_end")
    RD = Q; ML = Q + 8
    a(f"ds_read_b128 v[{ML}:{ML+3}], v{T[3]}\nds_read_b128 v[{ML+4}:{ML+7}], v{T[3]} offset:16")
    for w in range(4):
        a(f"ds_read_b64 v[{RD+2*w}:{RD+2*w+1}], v{T[1]} offset:{w*WSCR}")
    RC = T[8]
    O0, O1 = RC, RC + 1
    a("s_waitcnt lgkmcnt(4)")
    a(f"v_max3_f32 v{RC+2}, v{ML}, v{ML+2}, v{ML+4}\nv_max_f32 v{RC+2}, v{RC+2}, v{ML+6}")
    for w in range(4): a(f"v_sub_f32 v{ML+2*w}, v{ML+2*w}, v{RC+2}")
    for w in range(4): a(f"v_exp_f32 v{ML+2*w}, v{ML+2*w}")
    a("s_waitcnt lgkmcnt(0)")
    for w in range(4):
        op = "v_mul_f32" if w == 0 else "v_fmac_f32"
        a(f"{op} v{O0}, v{ML+2*w}, v{RD+2*w}\n{op} v{O1}, v{ML+2*w}, v{RD+2*w+1}\n{op} v{RC+3}, v{ML+2*w}, v{ML+2*w+1}")
    for k in range(4): a(f"v_min_u32 v{RC+k}, -2, v{RC+k}")
    a(f"s_cmp_eq_u32 s{sSplit}, 0\ns_cbranch_scc1 L_flagchk")
    a(f"buffer_store_dwordx4 v[{RC}:{RC+3}], v{vL16}, s[{SWS}:{SWS+3}], s6 offen sc1")
    if diag:
        a("s_waitcnt vmcnt(0)")
        stamp(5)
    a("s_branch L_end")
    a("L_flagchk:")
    a(f"s_and_b32 s{sT}, s{sFl}, 0xffff\ns_cmp_ge_u32 s{sT}, 7\ns_cbranch_scc1 L_poll")
    a(f"s_mov_b32 s{sFl}, 0\ns_atomic_add s{sFl}, s[{SDBG}:{SDBG+1}], s{sFo} glc\ns_waitcnt lgkmcnt(0)\ns_branch L_flagchk")
    a("L_poll:")
    PR = AO - 4
    for s in range(1, 8):
        a(f"s_add_u32 s{sT}, s5, {s*4096}")
        a(f"buffer_load_dwordx4 v[{PR+4*s}:{PR+4*s+3}], v{vL16}, s[{SWS}:{SWS+3}], s{sT} offen sc1")
    if diag: a("s_add_u32 s90, s90, 1")
    ck, mxx = T[12], T[13]
    a(f"v_mov_b32 v{ck}, 0\nv_mov_b32 v{mxx}, v{RC+2}")
    for s in range(1, 8):
        a(f"s_waitcnt vmcnt({7-s})")
        a(f"v_max3_u32 v{ck}, v{ck}, v{PR+4*s}, v{PR+4*s+1}\nv_max3_u32 v{ck}, v{ck}, v{PR+4*s+2}, v{PR+4*s+3}")
        a(f"v_max_f32 v{mxx}, v{mxx}, v{PR+4*s+2}")
    a(f"v_cmp_eq_u32 vcc, -1, v{ck}")
    W = Q
    a(f"v_sub_f32 v{W}, v{RC+2}, v{mxx}")
    for s in range(1, 8): a(f"v_sub_f32 v{W+s}, v{PR+4*s+2}, v{mxx}")
    a("s_cbranch_vccnz L_poll")
    for s in range(8): a(f"v_exp_f32 v{W+s}, v{W+s}")
    r0, r1, sm = T[4], T[5], T[6]
    a(f"v_mul_f32 v{sm}, v{W}, v{RC+3}\nv_mul_f32 v{r0}, v{W}, v{O0}\nv_mul_f32 v{r1}, v{W}, v{O1}")
    for s in range(1, 8): a(f"v_fmac_f32 v{sm}, v{W+s}, v{PR+4*s+3}")
    a(f"v_rcp_f32 v{sm}, v{sm}")
    for s in range(1, 8):
        a(f"v_fmac_f32 v{r0}, v{W+s}, v{PR+4*s}\nv_fmac_f32 v{r1}, v{W+s}, v{PR+4*s+1}")
    a(f"v_mul_f32 v{r0}, v{r0}, v{sm}\nv_mul_f32 v{r1}, v{r1}, v{sm}")
    a(f"v_lshlrev_b32 v{T[0]}, 2, v{vLane}")
    a(f"v_cvt_pk_bf16_f32 v{r0}, v{r0}, v{r1}")
    a(f"buffer_store_dword v{r0}, v{T[0]}, s[{SOUT}:{SOUT+3}], s{sOff} offen {oflags}")
    if diag:
        a("s_waitcnt vmcnt(0)")
        stamp(6)
    a("L_end:")
    if diag:
        a("s_waitcnt vmcnt(0)\ns_mov_b64 exec, 1")
        a(f"s_getreg_b32 s94, hwreg(HW_REG_XCC_ID)\ns_mov_b32 s88, s{sIter}")
        a(f"s_mul_i32 s4, s95, {NW}\ns_add_u32 s4, s4, s{sW}\ns_lshl_b32 s4, s4, 6\ns_add_u32 s4, s4, 0x200000")
        for k in range(16):
            a(f"v_mov_b32 v{24+k}, s{64+2*k}")
        for k in range(4):
            a(f"buffer_store_dwordx4 v[{24+4*k}:{27+4*k}], off, s[{SWS}:{SWS+3}], s4 offset:{16*k}")
    a("L_exit:\ns_endpgm")
    body = a.finish()
    nv = (NV + 7) // 8 * 8
    txt = HDR + f"""; @launch grid=(256,1,1) block=({NW*64},1,1) lds={LDS_SZ}
.amdgcn_target "amdgcn-amd-amdhsa--gfx950"
.text
.globl {KN}
.p2align 8
.type {KN},@function
{KN}:
{body}
.section .rodata,"a"
.p2align 6
.amdhsa_kernel {KN}
  .amdhsa_next_free_vgpr {nv}
  .amdhsa_next_free_sgpr {NSGPR}
  .amdhsa_accum_offset {nv}
  .amdhsa_group_segment_fixed_size 0
  .amdhsa_kernarg_size 80
  .amdhsa_user_sgpr_count 2
  .amdhsa_user_sgpr_kernarg_segment_ptr 1
  .amdhsa_system_sgpr_workgroup_id_x 1
  .amdhsa_float_denorm_mode_32 3
.end_amdhsa_kernel
"""
    return txt, len(a.ins), a.nops

if __name__ == "__main__":
    sys.path.insert(0, "bench")
    from build import build
    kw = eval("dict(" + (sys.argv[2] if len(sys.argv) > 2 else "") + ")")
    txt, n, nops = gen(**kw)
    p = f"bench/{sys.argv[1]}.s"
    open(p, "w").write(txt)
    print("instrs", n, "nop states", nops)
    print(build(p))
```

```python
import sys
sys.path.insert(0, "bench")
from build import build
import importlib, report
def mk(genmod, name, kw, spin=None):
    g = importlib.import_module(genmod)
    txt, n, nops = g.gen(**kw)
    import re
    L = re.search(r"; @launch grid=\(256,1,1\) block=\((\d+),1,1\) lds=(\d+)", txt)
    M = f"; @launch kernel={g.KN} grid=(256,1,1) block=({L.group(1)},1,1) lds={L.group(2)}"
    t = txt.replace(L.group(0), "\n".join([M, report.RL])) + report.report_kernel(nwaves=1024, nst=12, spin=spin)
    p = f"bench/{name}.s"
    open(p, "w").write(t)
    build(p); print(p)
if __name__ == "__main__":
    kw = dict(NSG=13, lead=12, diag=3)
    mk("gen8", "q_none", kw)
    mk("gen8", "q_end", kw, (6, "max"))
    mk("gen8", "q_k0", kw, (2, "avg"))
    mk("gen8", "q_it2", kw, (8, "avg"))
    mk("gen8", "q_le", kw, (3, "avg"))
    mk("gen8", "q_bar", kw, (4, "max"))
```

```python
import sys
from asmlib import Asm
KN = "standalone__kv_cache_quant_int4_int2_kv_with_per_channel_or_per_token_scales__decode_kernel"
HDR = open("standalone__kv_cache_quant_int4_int2_kv_with_per_channel_or_per_token_scales__decode.s.ref").read().split("; Override launch")[0]

def gen(NSG=12, lead=12, jbits=(9,10), gbits=(12,13), wbits=(11,14),
        splitb=(0,1,2), flags="nt", pflags="nt", qflags="", diag=False, notail=False, oflags="",
        cgap=5, steal=True, noclear=False, pre=8, flag_it=None,
        dup=True, touch=True, pipe=True, qlds=True, latefl=True, keep=0, two=False, rflags="sc1"):
    NW = 4
    a = Asm()
    LIM = 4 * (16 - NSG)
    R0 = 16 - lead
    C0 = (R0 - cgap) % 16
    cwrap = 1 if C0 > R0 or (C0 == R0) else 0
    if flag_it is None: flag_it = NSG - 4
    PITCH = 272
    WSCR = 16 * PITCH
    LDS_ML = NW * WSCR
    LDS_P = LDS_ML + 512
    LDS_Q = LDS_P + 12288
    LDS_SZ = LDS_Q + 1024
    CNTOFF = 0x100000
    WS_SZ = 0x400000 if diag else 0x120000
    OOB = 0x8000000
    SK, SV, SQ, SKS, SKZ, SVS, SVZ, SOUT, SDBG, SWS = 8, 12, 16, 20, 24, 28, 32, 36, 40, 44
    sW, sBH, sSplit, sT, sT2, sOff = 3, 48, 49, 50, 51, 52
    sLog2e, sScale, sMask = 53, 54, 55
    sCur, sNx, sMode, sIter, sReg, sBHB = 56, 57, 58, 59, 60, 61
    sPK, sPV = 62, 63
    sA = 4; sB = 6
    X = 96 if diag else 64
    sFl, sFo, sCnt, sVic, sBest, sRow = X, X + 1, X + 2, X + 3, X + 4, X + 5
    NSGPR = X + 6
    sRegQ = 2
    assert max(jbits) < 12
    vOff, vLane, vWr, vPk, vPv, vMk0, vMk1, vRd = 1, 2, 3, 4, 5, 6, 7, 8
    vPa, vPb = 9, 12
    vM, vL = 10, 11
    vVz, vVsH = 13, 14
    vL16 = 15
    RAW = 16
    Q = 28; NZ = 44; KS = 52; ACC = 60
    T = list(range(68, 92))
    AO = 92; VB = 108; RING = 124
    TA = RING + 64
    NV = TA + 8

    a(f"s_cmp_ge_u32 s2, 256\ns_cbranch_scc1 L_exit")
    def stamp(k):
        if diag:
            a(f"s_memrealtime s[{64+2*k}:{65+2*k}]\ns_waitcnt lgkmcnt(0)")
    if diag:
        for k in range(64, 96): a(f"s_mov_b32 s{k}, 0")
    stamp(0)
    for srd, off in ((SWS, 72), (SKS, 24), (SKZ, 32), (SVS, 40), (SVZ, 48), (SK, 8), (SV, 16), (SQ, 0), (SDBG, 64), (SOUT, 56)):
        a(f"s_load_dwordx2 s[{srd}:{srd+1}], s[0:1], {off}")
    a(f"v_lshrrev_b32 v{T[0]}, 6, v0")
    a(f"v_and_b32 v{vLane}, 63, v0")
    a(f"v_readfirstlane_b32 s{sW}, v{T[0]}")
    for srd, sz in ((SK, 0x8000000), (SV, 0x8000000), (SQ, 32768), (SKS, 0x100000), (SKZ, 0x100000), (SVS, 0x80000), (SVZ, 0x80000), (SOUT, 32768), (SDBG, 256), (SWS, WS_SZ)):
        a(f"s_mov_b32 s{srd+2}, {sz}\ns_mov_b32 s{srd+3}, 0x20000")
    if tuple(splitb) == (0, 1, 2):
        a(f"s_and_b32 s{sSplit}, s2, 7\ns_lshr_b32 s{sBH}, s2, 3")
    else:
        a(f"s_mov_b32 s{sSplit}, 0\ns_mov_b32 s{sBH}, 0")
        for k, i in enumerate(splitb):
            a(f"s_bfe_u32 s{sT}, s2, {i | (1 << 16)}\ns_lshl_b32 s{sT}, s{sT}, {k}\ns_or_b32 s{sSplit}, s{sSplit}, s{sT}")
        for k, i in enumerate([i for i in range(8) if i not in splitb]):
            a(f"s_bfe_u32 s{sT}, s2, {i | (1 << 16)}\ns_lshl_b32 s{sT}, s{sT}, {k}\ns_or_b32 s{sBH}, s{sBH}, s{sT}")
    a(f"s_lshl_b32 s{sBHB}, s{sBH}, 22")
    a(f"s_lshl_b32 s{sReg}, s{sSplit}, 19\ns_or_b32 s{sReg}, s{sReg}, s{sBHB}")
    if diag: a("s_mov_b32 s95, s2")
    def qbits(dst, q, base):
        a(f"s_and_b32 s{sT2}, s{q}, 1\ns_lshl_b32 s{sT2}, s{sT2}, {wbits[0]}\ns_or_b32 s{dst}, s{base}, s{sT2}")
        a(f"s_bfe_u32 s{sT2}, s{q}, {1 | (1 << 16)}\ns_lshl_b32 s{sT2}, s{sT2}, {wbits[1]}\ns_or_b32 s{dst}, s{dst}, s{sT2}")
    qbits(sRegQ, sW, sReg)
    a(f"s_mov_b32 s{sCur}, s{sRegQ}\ns_mov_b32 s{sNx}, s{sRegQ}\ns_mov_b32 s{sVic}, s{sSplit}")
    c_, gg = T[1], T[4]
    a(f"v_and_b32 v{c_}, 15, v{vLane}\nv_lshrrev_b32 v{gg}, 4, v{vLane}")
    a(f"v_mov_b32 v{T[2]}, 0")
    for lb, ab in ((4, gbits[0]), (5, gbits[1])):
        a(f"v_bfe_u32 v{T[3]}, v0, {lb}, 1\nv_lshl_or_b32 v{T[2]}, v{T[3]}, {ab}, v{T[2]}")
    a(f"v_lshl_or_b32 v{vOff}, v{c_}, 4, v{T[2]}")
    a(f"v_lshrrev_b32 v{vPv}, 8, v{T[2]}")
    for lb, ab in ((0, jbits[0]), (1, jbits[1])):
        a(f"v_bfe_u32 v{T[3]}, v0, {lb}, 1\nv_lshl_or_b32 v{vPv}, v{T[3]}, {ab-8}, v{vPv}")
    a(f"v_lshlrev_b32 v{vPk}, 3, v{c_}")
    a(f"v_lshlrev_b32 v{vL16}, 4, v{vLane}")
    a(f"s_mul_i32 s{sT2}, s{sW}, {WSCR}")
    a(f"v_mul_u32_u24 v{vWr}, {4*PITCH}, v{gg}\nv_add3_u32 v{vWr}, v{vWr}, v{vPk}, s{sT2}")
    a(f"v_mul_u32_u24 v{vRd}, {PITCH}, v{c_}\nv_lshl_add_u32 v{vRd}, v{gg}, 4, v{vRd}\nv_add_u32 v{vRd}, s{sT2}, v{vRd}")
    pq = T[5]
    a(f"v_bfe_u32 v{pq}, v{vLane}, 2, 2\nv_lshlrev_b32 v{pq}, 8, v{pq}\nv_lshl_or_b32 v{pq}, v{gg}, 4, v{pq}")
    a(f"s_mov_b32 s{sLog2e}, 0x3fb8aa3b\ns_mov_b32 s{sScale}, 0x3db504f3\ns_mov_b32 s{sMask}, 0xffff0000")
    a(f"s_mov_b32 s{sMode}, 0\ns_mov_b32 s{sIter}, 0\ns_mov_b32 s{sFl}, 0\ns_lshl_b32 s{sFo}, s{sBH}, 3")
    a(f"s_lshl_b32 s{sOff}, s{sBH}, 10")
    a(f"s_lshl_b32 s{sCnt}, s{sBH}, 12\ns_add_u32 s{sCnt}, s{sCnt}, {CNTOFF}")
    a(f"s_lshl_b32 s{sA}, s{sSplit}, 12\ns_lshl_b32 s{sT}, s{sBH}, 15\ns_add_u32 s{sA}, s{sA}, s{sT}")
    a(f"s_cmp_eq_u32 s{sSplit}, 0\ns_cselect_b32 s{sT2}, 0, -1\ns_cselect_b32 s{sA}, s{sCnt}, s{sA}\ns_cselect_b32 s{sA+1}, 0x10000, 1")
    a(f"s_lshl_b32 s{sT}, s{sW}, 10\ns_add_u32 s{sA}, s{sA}, s{sT}")
    a(f"s_lshr_b32 s{sT}, s{sBH}, 1\ns_lshl_b32 s{sT}, s{sT}, 8\ns_add_u32 s{sCnt}, s{sCnt}, s{sT}")
    for k in range(4): a(f"v_mov_b32 v{AO+k}, s{sT2}")
    a(f"s_lshl_b32 s{sT2}, s{sW}, 10")
    a(f"s_lshr_b32 s{sPK}, s{sReg}, 7\ns_add_u32 s{sPK}, s{sPK}, s{sT2}")
    a(f"s_lshr_b32 s{sPV}, s{sReg}, 8\ns_lshl_b32 s{sT}, s{sW}, 9\ns_add_u32 s{sPV}, s{sPV}, s{sT}")
    a(f"s_add_u32 s{sB}, s{sT2}, {LDS_P}\ns_add_u32 s{sB+1}, s{sT}, {LDS_P + 8192}")
    a(f"s_mov_b32 m0, s{sB}")
    a("s_waitcnt lgkmcnt(0)")
    stamp(1)

    def ioff(i):
        hs, j = i & 1, i >> 1
        return (hs << 8) | ((j & 1) << jbits[0]) | ((j >> 1) << jbits[1])
    def RG(p, k): return RING + 4 * p + k
    ops = {}
    def global_params(counted=False):
        em = a.vmem if counted else a
        a(f"s_lshr_b32 s{sPK}, s{sNx}, 15\ns_lshl_b32 s{sPK}, s{sPK}, 8\ns_lshr_b32 s{sPV}, s{sNx}, 8")
        em(f"buffer_load_dwordx2 v[{RAW}:{RAW+1}], v{vPk}, s[{SKS}:{SKS+3}], s{sPK} offen {pflags}")
        em(f"buffer_load_dwordx2 v[{RAW+2}:{RAW+3}], v{vPk}, s[{SKS}:{SKS+3}], s{sPK} offen offset:128 {pflags}")
        em(f"buffer_load_dwordx2 v[{RAW+4}:{RAW+5}], v{vPk}, s[{SKZ}:{SKZ+3}], s{sPK} offen {pflags}")
        em(f"buffer_load_dwordx2 v[{RAW+6}:{RAW+7}], v{vPk}, s[{SKZ}:{SKZ+3}], s{sPK} offen offset:128 {pflags}")
        em(f"buffer_load_ushort v{RAW+8}, v{vPv}, s[{SVS}:{SVS+3}], s{sPV} offen {pflags}")
        em(f"buffer_load_ushort v{RAW+9}, v{vPv}, s[{SVZ}:{SVZ+3}], s{sPV} offen {pflags}")
    def lds_params():
        a(f"s_bfe_u32 s{sT}, s{sNx}, {15 | (4 << 16)}\ns_lshl_b32 s{sPK}, s{sT}, 8\ns_bfe_u32 s{sPV}, s{sNx}, {8 | (11 << 16)}")
        a(f"v_add_u32 v{vPa}, s{sPK}, v{vPk}\nv_add_u32 v{vPb}, s{sPV}, v{vPv}")
        a(f"ds_read_b64 v[{RAW}:{RAW+1}], v{vPa} offset:{LDS_P}")
        a(f"ds_read_b64 v[{RAW+2}:{RAW+3}], v{vPa} offset:{LDS_P+128}")
        a(f"ds_read_b64 v[{RAW+4}:{RAW+5}], v{vPa} offset:{LDS_P+4096}")
        a(f"ds_read_b64 v[{RAW+6}:{RAW+7}], v{vPa} offset:{LDS_P+4096+128}")
        a(f"ds_read_u16 v{RAW+8}, v{vPb} offset:{LDS_P+8192}")
        a(f"ds_read_u16 v{RAW+9}, v{vPb} offset:{LDS_P+10240}")
    def issue(pp):
        p = pp % 16
        srd = SK if p < 8 else SV
        sb = sCur if pp < 16 else sNx
        ops[p] = a.vmem(f"buffer_load_dwordx4 v[{RG(p,0)}:{RG(p,3)}], v{vOff}, s[{srd}:{srd+3}], s{sb} offen offset:{ioff(p & 7)} {flags}")
    if two:
        a(f"s_cmp_lg_u32 s{sSplit}, 0\ns_cbranch_scc1 L_noz")
        a(f"buffer_store_dwordx4 v[{AO}:{AO+3}], v{vL16}, s[{SWS}:{SWS+3}], s{sA} offen sc1")
        a("L_noz:")
    elif not noclear:
        a(f"buffer_store_dwordx4 v[{AO}:{AO+3}], v{vL16}, s[{SWS}:{SWS+3}], s{sA} offen sc1")
    a(f"buffer_load_dwordx4 v{vL16}, s[{SKS}:{SKS+3}], s{sPK} offen {pflags} lds")
    a(f"s_add_u32 m0, s{sB}, 4096")
    a(f"buffer_load_dwordx4 v{vL16}, s[{SKZ}:{SKZ+3}], s{sPK} offen {pflags} lds")
    a(f"s_mov_b32 exec_hi, 0\ns_mov_b32 m0, s{sB+1}")
    a(f"buffer_load_dwordx4 v{vL16}, s[{SVS}:{SVS+3}], s{sPV} offen {pflags} lds")
    a(f"s_add_u32 m0, s{sB+1}, 2048")
    a(f"buffer_load_dwordx4 v{vL16}, s[{SVZ}:{SVZ+3}], s{sPV} offen {pflags} lds")
    if qlds:
        a(f"s_mov_b32 exec_lo, 0xffff\ns_lshl_b32 s{sT}, s{sW}, 8\ns_add_u32 m0, s{sT}, {LDS_Q}\ns_add_u32 s{sOff}, s{sOff}, s{sT}")
        a(f"buffer_load_dwordx4 v{vL16}, s[{SQ}:{SQ+3}], s{sOff} offen {qflags} lds")
        a("s_mov_b64 exec, -1")
    else:
        a("s_mov_b64 exec, -1")
        for s in range(4):
            a(f"buffer_load_dwordx4 v[{Q+4*s}:{Q+4*s+3}], v{pq}, s[{SQ}:{SQ+3}], s{sOff} offen offset:{64*s} {qflags}")
    nq = 0 if qlds else 4
    pre = min(pre, lead)
    for p in range(pre): issue(p)
    a(f"v_and_b32 v{T[6]}, 1, v{vLane}\nv_lshlrev_b32 v{T[6]}, 4, v{T[6]}")
    a(f"v_mov_b32 v{T[7]}, 0xffff\nv_lshlrev_b32 v{T[7]}, v{T[6]}, v{T[7]}")
    a(f"v_bfe_i32 v{T[6]}, v{vLane}, 1, 1")
    a(f"v_and_b32 v{vMk1}, v{T[6]}, v{T[7]}\nv_xor_b32 v{vMk0}, v{vMk1}, v{T[7]}")
    a(f"v_mov_b32 v{vM}, 0xf149f2ca\nv_mov_b32 v{vL}, 0")
    for k in range(8): a(f"v_mov_b32 v{ACC+k}, 0")
    if diag == 3:
        a(f"s_waitcnt vmcnt({nq + pre})"); stamp(10)
    vLds, vMLw, vOr, vMLr, vOut = TA, TA + 1, TA + 2, TA + 3, TA + 4
    a(f"v_lshlrev_b32 v{vLds}, 4, v{c_}\nv_lshl_or_b32 v{vLds}, v{gg}, 9, v{vLds}")
    a(f"s_mul_i32 s{sT}, s{sW}, {WSCR}")
    a(f"v_add_u32 v{vLds}, s{sT}, v{vLds}")
    a(f"v_lshlrev_b32 v{T[0]}, 3, v{vLane}")
    a(f"s_lshl_b32 s{sT}, s{sW}, 3\ns_add_u32 s{sT}, s{sT}, {LDS_ML}")
    a(f"v_add_u32 v{vMLw}, s{sT}, v{T[0]}")
    a(f"s_lshl_b32 s{sT}, s{sW}, 9")
    a(f"v_add_u32 v{vOr}, s{sT}, v{T[0]}")
    a(f"s_lshl_b32 s{sT}, s{sW}, 5\ns_add_u32 s{sT}, s{sT}, {LDS_ML}")
    a(f"v_mov_b32 v{vMLr}, s{sT}")
    a(f"s_lshl_b32 s{sT}, s{sBH}, 2\ns_add_u32 s{sT}, s{sT}, s{sW}\ns_lshl_b32 s{sT}, s{sT}, 8")
    a(f"v_lshl_add_u32 v{vOut}, v{vLane}, 2, s{sT}")
    a(f"s_lshl_b32 s{sRow}, s{sBH}, 15\ns_lshl_b32 s{sT}, s{sW}, 10\ns_add_u32 s{sRow}, s{sRow}, s{sT}")
    a(f"s_waitcnt vmcnt({nq + pre})\ns_barrier")
    if diag == 3:
        stamp(11)
    for p in range(pre, lead): issue(p)
    lds_params()
    if qlds:
        for s in range(4):
            a(f"ds_read_b128 v[{Q+4*s}:{Q+4*s+3}], v{pq} offset:{LDS_Q + 64*s}")
        a("s_waitcnt lgkmcnt(4)")
    else:
        a("s_waitcnt lgkmcnt(0)")
    if not latefl:
        a(f"s_cmp_lg_u32 s{sW}, 0\ns_cbranch_scc1 L_loop")
        a(f"s_atomic_add s{sA+1}, s[{SDBG}:{SDBG+1}], s{sFo}")
    names = {v: k for k, v in ops.items()}
    top_names = [names[x] for x in a.vm]

    dupB = bool(dup and LIM and steal)
    def resolve():
        a(f"s_add_u32 s{sT2}, s{sIter}, 1")
        a(f"s_cmp_ge_u32 s{sT2}, {NSG}\ns_cbranch_scc1 L_rdyn")
        a(f"s_lshl_b32 s{sNx}, s{sT2}, 15\ns_or_b32 s{sNx}, s{sNx}, s{sRegQ}")
        a("s_branch L_own")
        a("L_rdyn:")
        a(f"s_mov_b32 s{sNx}, {OOB}")
        if LIM:
            a(f"s_cmp_lg_u32 s{sMode}, 1\ns_cbranch_scc1 L_pdone")
            a("L_resolve:")
            a("s_waitcnt lgkmcnt(0)")
            a(f"s_lshl_b32 s{sT2}, s{sVic}, 3\ns_lshr_b64 s[{sB}:{sB+1}], s[{sA}:{sA+1}], s{sT2}\ns_and_b32 s{sT}, s{sB}, 0xff")
            a(f"s_cmp_ge_u32 s{sT}, {LIM}\ns_cbranch_scc1 L_pick")
            a(f"s_lshr_b32 s{sNx}, s{sT}, 2\ns_add_u32 s{sNx}, s{sNx}, {NSG}\ns_lshl_b32 s{sNx}, s{sNx}, 15\ns_lshl_b32 s{sOff}, s{sVic}, 19\ns_or_b32 s{sNx}, s{sNx}, s{sOff}\ns_or_b32 s{sNx}, s{sNx}, s{sBHB}")
            qbits(sNx, sT, sNx)
            if diag:
                a(f"s_cmp_lg_u32 s{sVic}, s{sSplit}\ns_addc_u32 s92, s92, 0")
            a(f"s_cmp_lg_u32 s{sVic}, s{sSplit}\ns_cbranch_scc1 L_pick")
            a(f"s_cmp_lt_u32 s{sT}, {LIM-1}\ns_cbranch_scc1 L_own")
            a("L_pick:")
            if steal:
                a(f"s_lshl_b32 s{sT2}, s{sVic}, 3\ns_lshl_b64 s[{sB}:{sB+1}], 1, s{sT2}\ns_add_u32 s{sA}, s{sA}, s{sB}\ns_addc_u32 s{sA+1}, s{sA+1}, s{sB+1}")
                a(f"s_lshl_b32 s{sT2}, s{sSplit}, 3\ns_lshr_b64 s[{sB}:{sB+1}], s[{sA}:{sA+1}], s{sT2}")
                a(f"s_sub_u32 s{sT2}, 64, s{sT2}\ns_lshl_b64 s[{sA}:{sA+1}], s[{sA}:{sA+1}], s{sT2}\ns_or_b64 s[{sA}:{sA+1}], s[{sA}:{sA+1}], s[{sB}:{sB+1}]")
                a(f"s_mov_b32 s{sBest}, {LIM - keep}\ns_mov_b32 s{sVic}, 0")
                for i in range(1, 8):
                    a(f"s_bfe_u32 s{sT}, s{sA + (i >> 2)}, {(8 * (i & 3)) | (8 << 16)}\ns_cmp_lt_u32 s{sT}, s{sBest}\ns_cselect_b32 s{sBest}, s{sT}, s{sBest}\ns_cselect_b32 s{sVic}, {i}, s{sVic}")
                a(f"s_cmp_eq_u32 s{sVic}, 0\ns_cselect_b32 s{sMode}, 2, 1\ns_cbranch_scc1 L_have")
                a(f"s_add_u32 s{sVic}, s{sVic}, s{sSplit}\ns_and_b32 s{sVic}, s{sVic}, 7")
                a(f"s_cmp_lt_u32 s{sNx}, {OOB}\ns_cbranch_scc1 L_have")
                a(f"s_lshl_b32 s{sT2}, s{sVic}, 3\ns_lshl_b64 s[{sA}:{sA+1}], 1, s{sT2}")
                a(f"s_atomic_add_x2 s[{sA}:{sA+1}], s[{SWS}:{SWS+1}], s{sCnt} glc")
                a("s_branch L_resolve")
            else:
                a(f"s_mov_b32 s{sMode}, 2")
            a("L_have:")
            a(f"s_xor_b32 s{sT}, s{sNx}, s{sReg}\ns_cmp_lt_u32 s{sT}, {1 << 19}\ns_cbranch_scc1 L_own")
            a(f"s_cmp_ge_u32 s{sNx}, {OOB}\ns_cbranch_scc1 L_pdone")
            if dupB: a("s_branch L_stolen")
            else: global_params()
        if not dupB: a("s_branch L_pdone")
        a("L_own:")
        lds_params()
        a("L_pdone:")
    def claim(sx):
        if not sx:
            if latefl:
                a(f"s_cmp_lg_u32 s{sIter}, 1\ns_cbranch_scc1 L_nopub")
                a(f"s_and_b32 s{sT}, s{sBH}, 3\ns_cmp_lg_u32 s{sT}, s{sW}\ns_cbranch_scc1 L_nopub")
                if two: a(f"s_cmp_lg_u32 s{sSplit}, 0\ns_cbranch_scc1 L_nopub")
                a(f"s_atomic_add s{sA+1}, s[{SDBG}:{SDBG+1}], s{sFo}")
                a("L_nopub:")
            a(f"s_cmp_lg_u32 s{sIter}, {flag_it}\ns_cbranch_scc1 L_nofl")
            a(f"s_load_dword s{sFl}, s[{SDBG}:{SDBG+1}], s{sFo}")
            a("L_nofl:")
        if LIM:
            if not sx: a(f"s_cmp_lt_u32 s{sIter}, {NSG - 1 - cwrap}\ns_cbranch_scc1 L_claimed{sx}")
            a(f"s_cmp_eq_u32 s{sMode}, 2\ns_cbranch_scc1 L_claimed{sx}")
            if not sx:
                a("L_rdy:")
                a(f"s_cmp_ge_u32 s{sFl}, 0x10000\ns_cbranch_scc1 L_claim")
                a(f"s_mov_b32 s{sFl}, 0\ns_atomic_add s{sFl}, s[{SDBG}:{SDBG+1}], s{sFo} glc\ns_waitcnt lgkmcnt(0)\ns_branch L_rdy")
                a("L_claim:")
            a(f"s_mov_b32 s{sMode}, 1\ns_lshl_b32 s{sT2}, s{sVic}, 3\ns_lshl_b64 s[{sA}:{sA+1}], 1, s{sT2}")
            a(f"s_atomic_add_x2 s[{sA}:{sA+1}], s[{SWS}:{SWS+1}], s{sCnt} glc")
            a(f"L_claimed{sx}:")
    assert 1 < flag_it < NSG - 1 - cwrap
    cur = dict(ops)
    def wait_pos(p):
        a.wait_vm(cur[p] if p < lead else ops[p])
    tp = [T[0], T[2], T[4], T[6]]
    D = [T[16], T[20]]
    Z = T[8:12]; U = T[12:16]
    PZ = [T[0], T[2]]; PA = [T[12], T[14]]
    mx, t0, f, fD = T[4], T[5], T[7], T[6]
    def expand():
        for hs in range(2):
            for r in range(2):
                z = RAW + 4 + 2 * hs + r; s = RAW + 2 * hs + r
                a(f"v_lshlrev_b32 v{NZ+hs*4+2*r}, 16, v{z}\nv_and_b32 v{NZ+hs*4+2*r+1}, s{sMask}, v{z}")
                a(f"v_and_b32 v{KS+hs*4+2*r}, 0xffff, v{s}\nv_and_b32 v{KS+hs*4+2*r+1}, s{sMask}, v{s}")
        a(f"v_lshlrev_b32 v{vVz}, 16, v{RAW+9}\nv_lshlrev_b32 v{vVsH}, 16, v{RAW+8}")
    def top():
        wait_pos(0)
        if R0 > 8: a("s_waitcnt lgkmcnt(0)")
        if diag:
            for kk, it in (((2, 0), (7, 1), (8, 2), (9, 5), (10, 11)) if diag == 1 else ((2, 0), (7, 1), (8, 2))):
                a(f"s_cmp_lg_u32 s{sIter}, {it}\ns_cbranch_scc1 L_nost{kk}")
                stamp(kk)
                a(f"L_nost{kk}:")
        if R0 == 0: expand()
    def k_deq(i):
        hs, j = i & 1, i >> 1
        t = tp[i & 3]; d = D[i & 1]
        wait_pos(i)
        if lead < 16: issue(i + lead)
        for k in range(4): a(f"v_cvt_f32_i32 v{d+k}, v{RG(i,k)}")
        if lead == 16: issue(i + lead)
        if i == 0 and R0 != 0: expand()
        for k in (0, 2):
            a(f"v_pk_add_f32 v[{d+k}:{d+k+1}], v[{d+k}:{d+k+1}], v[{NZ+hs*4+k}:{NZ+hs*4+k+1}] neg_lo:[0,1] neg_hi:[0,1]")
        for r in range(2):
            a(f"v_cvt_pk_bf16_f32 v{t+r}, v{d+2*r}, v{d+2*r+1}")
        for k in range(4):
            a(f"v_dot2_f32_bf16 v{d+k}, v{t+(k>>1)}, v{KS+hs*4+k}, 0")
        for r in range(2):
            a(f"v_cvt_pk_bf16_f32 v{t+r}, v{d+2*r}, v{d+2*r+1}")
        a(f"ds_write_b64 v{vWr}, v[{t}:{t+1}] offset:{j*PITCH + hs*128}")
    def a_read():
        for s in range(4):
            a(f"ds_read_b128 v[{AO+4*s}:{AO+4*s+3}], v{vRd} offset:{64*s}")
    def v_deq(i):
        hs, j = i & 1, i >> 1
        b = j & 1; d = D[i & 1]; p = 8 + i
        if hs == 0:
            a(f"v_mov_b32_dpp v{PZ[b]}, v{vVz} row_newbcast:{j} row_mask:0xf bank_mask:0xf")
        wait_pos(p)
        if lead < 16: issue(p + lead)
        for k in range(4): a(f"v_cvt_f32_i32 v{d+k}, v{RG(p,k)}")
        if lead == 16: issue(p + lead)
        for k in (0, 2):
            a(f"v_pk_add_f32 v[{d+k}:{d+k+1}], v[{d+k}:{d+k+1}], v[{PZ[b]}:{PZ[b]+1}] op_sel:[0,0] op_sel_hi:[1,0] neg_lo:[0,1] neg_hi:[0,1]")
        for r in range(2):
            a(f"v_cvt_pk_bf16_f32 v{VB+2*i+r}, v{d+2*r}, v{d+2*r+1}")
    def v_mma(i):
        hs, j = i & 1, i >> 1
        b = j & 1
        if hs == 0:
            a(f"v_and_b32 v{PA[b]}, v{vMk0}, v{Z[j]}\nv_and_b32 v{PA[b]+1}, v{vMk1}, v{Z[j]}")
        d = ACC + 4 * hs
        a(f"v_mfma_f32_16x16x16_bf16 v[{d}:{d+3}], v[{PA[b]}:{PA[b]+1}], v[{VB+2*i}:{VB+2*i+1}], v[{d}:{d+3}]")
    def qk():
        for s in range(4):
            a(f"s_waitcnt lgkmcnt({3-s})")
            a(f"v_mfma_f32_16x16x32_bf16 v[{Z[0]}:{Z[3]}], v[{AO+4*s}:{AO+4*s+3}], v[{Q+4*s}:{Q+4*s+3}], " + ("0" if s == 0 else f"v[{Z[0]}:{Z[3]}]"))
    def sm1():
        for k in (0, 2):
            a(f"v_cvt_pk_bf16_f32 v{U[k]}, v{Z[k]}, v{Z[k+1]}")
        for k in (0, 2):
            a(f"v_lshlrev_b32 v{Z[k]}, 16, v{U[k]}\nv_and_b32 v{Z[k+1]}, s{sMask}, v{U[k]}")
        for k in range(4): a(f"v_mul_f32 v{Z[k]}, s{sScale}, v{Z[k]}")
        for k in (0, 2):
            a(f"v_cvt_pk_bf16_f32 v{U[k]}, v{Z[k]}, v{Z[k+1]}")
        for k in (0, 2):
            a(f"v_lshlrev_b32 v{Z[k]}, 16, v{U[k]}\nv_and_b32 v{Z[k+1]}, s{sMask}, v{U[k]}")
        a(f"v_max3_f32 v{mx}, v{Z[0]}, v{Z[1]}, v{Z[2]}\nv_max_f32 v{mx}, v{mx}, v{Z[3]}")
    def sm2():
        for sw in ("v_permlane32_swap_b32", "v_permlane16_swap_b32"):
            a(f"v_mov_b32 v{t0}, v{mx}\n{sw} v{mx}, v{t0}\nv_max_f32 v{mx}, v{mx}, v{t0}")
        a(f"v_mul_f32 v{mx}, s{sLog2e}, v{mx}\nv_max_f32 v{mx}, v{mx}, v{vM}")
        a(f"v_sub_f32 v{f}, v{vM}, v{mx}\nv_mov_b32 v{vM}, v{mx}")
        for k in range(4): a(f"v_fma_f32 v{Z[k]}, v{Z[k]}, s{sLog2e}, -v{mx}")
        a(f"v_exp_f32 v{f}, v{f}")
        for k in range(4): a(f"v_exp_f32 v{Z[k]}, v{Z[k]}")
    def sm3():
        for h in range(4):
            a(f"v_mov_b32_dpp v{fD}, v{f} row_newbcast:{4*h} row_mask:{1<<h:#x} bank_mask:0xf")
        a(f"v_fma_f32 v{vL}, v{vL}, v{f}, v{Z[0]}")
        a(f"v_add_f32 v{t0}, v{Z[1]}, v{Z[2]}\nv_add_f32 v{vL}, v{vL}, v{Z[3]}\nv_add_f32 v{vL}, v{vL}, v{t0}")
        for k in range(4):
            a(f"v_mul_f32_dpp v{Z[k]}, v{vVsH}, v{Z[k]} row_newbcast:{k} row_mask:0xf bank_mask:0xf")
        for k in range(0, 8, 2):
            a(f"v_pk_mul_f32 v[{ACC+k}:{ACC+k+1}], v[{ACC+k}:{ACC+k+1}], v[{fD}:{fD+1}] op_sel:[0,0] op_sel_hi:[1,0]")
        for k in range(4): a(f"v_cvt_pk_bf16_f32 v{Z[k]}, v{Z[k]}, v{Z[k]}")
    H = lambda p: ("hook", p)
    steps = [top]
    for i in range(8): steps += [H(i), (lambda i=i: k_deq(i))]
    steps += [H(8), a_read, lambda: v_deq(0), qk, H(9), lambda: v_deq(1), sm1, H(10), lambda: v_deq(2), sm2, H(11), lambda: v_deq(3), sm3,
              H(12), lambda: v_deq(4), lambda: v_mma(0), lambda: v_mma(1), lambda: v_mma(2), lambda: v_mma(3)]
    for i in range(4, 8):
        if i + 1 < 8: steps += [H(9 + i), (lambda i=i: v_deq(i + 1))]
        steps += [(lambda i=i: v_mma(i))]
    def run(seq, sx):
        for st in seq:
            if isinstance(st, tuple):
                if st[1] == C0: claim(sx)
            else: st()
    def bottom():
        names = {v: k for k, v in ops.items()}
        tail_names = [names[x] for x in a.vm if x in names]
        assert tail_names == top_names and [names.get(x) for x in a.vm[-len(top_names):]] == top_names, (tail_names, top_names)
        a(f"s_add_u32 s{sIter}, s{sIter}, 1")
        a(f"s_cmp_lt_u32 s{sNx}, {OOB}\ns_mov_b32 s{sCur}, s{sNx}\ns_cbranch_scc1 L_loop")
    ir = steps.index(H(R0))
    if dupB:
        a("s_branch L_loop")
        vm0, ops0 = list(a.vm), dict(ops)
        n0 = len(a.ins)
        run(steps[:ir], "")
        del a.ins[n0:]
        a("L_stolen:")
        global_params(counted=True)
        run(steps[ir:], "S")
        names = {v: k for k, v in ops.items()}
        assert [names.get(x) for x in a.vm[-len(top_names):]] == top_names
        a(f"s_add_u32 s{sIter}, s{sIter}, 1\ns_mov_b32 s{sCur}, s{sNx}")
        a.vm = vm0; ops.clear(); ops.update(ops0)
    a("L_loop:")
    run(steps[:ir], "")
    resolve()
    run(steps[ir:], "")
    bottom()
    a.vm = []
    stamp(3)
    for sw in ("v_permlane32_swap_b32", "v_permlane16_swap_b32"):
        a(f"v_mov_b32 v{T[0]}, v{vL}\n{sw} v{vL}, v{T[0]}\nv_add_f32 v{vL}, v{vL}, v{T[0]}")
    a(f"ds_write_b128 v{vLds}, v[{ACC}:{ACC+3}]\nds_write_b128 v{vLds}, v[{ACC+4}:{ACC+7}] offset:256")
    a("s_mov_b64 exec, 0x1111")
    a(f"ds_write_b64 v{vMLw}, v[{vM}:{vL}]")
    a("s_mov_b64 exec, -1")
    a(f"s_lshl_b32 s6, s{sSplit}, 12\ns_add_u32 s6, s6, s{sRow}")
    a("s_waitcnt lgkmcnt(0)\ns_barrier")
    stamp(4)
    if notail: a("s_branch L_end")
    RD = Q; ML = Q + 8
    a(f"ds_read_b128 v[{ML}:{ML+3}], v{vMLr}\nds_read_b128 v[{ML+4}:{ML+7}], v{vMLr} offset:16")
    for w in range(4):
        a(f"ds_read_b64 v[{RD+2*w}:{RD+2*w+1}], v{vOr} offset:{w*WSCR}")
    RC = T[8]
    O0, O1 = RC, RC + 1
    PRS = [RING - 4, RING + 28]
    def poll(PR):
        for s in range(1, 8):
            a(f"s_add_u32 s{sT}, s{sRow}, {s*4096}")
            a(f"buffer_load_dwordx4 v[{PR+4*s}:{PR+4*s+3}], v{vL16}, s[{SWS}:{SWS+3}], s{sT} offen sc1")
        if diag: a("s_add_u32 s90, s90, 1")
    if two: a("s_branch L_red")
    a(f"s_cmp_lg_u32 s{sSplit}, 0\ns_cbranch_scc1 L_red")
    a("L_flagchk:")
    a(f"s_and_b32 s{sT}, s{sFl}, 0xffff\ns_cmp_ge_u32 s{sT}, 7\ns_cbranch_scc1 L_fok")
    a(f"s_mov_b32 s{sFl}, 0\ns_atomic_add s{sFl}, s[{SDBG}:{SDBG+1}], s{sFo} glc\ns_waitcnt lgkmcnt(0)\ns_branch L_flagchk")
    a("L_fok:")
    if touch: a(f"buffer_load_dword v{T[23]}, v{vOut}, s[{SOUT}:{SOUT+3}], 0 offen")
    poll(PRS[0])
    a("L_red:")
    a("s_waitcnt lgkmcnt(4)")
    a(f"v_max3_f32 v{RC+2}, v{ML}, v{ML+2}, v{ML+4}\nv_max_f32 v{RC+2}, v{RC+2}, v{ML+6}")
    for w in range(4): a(f"v_sub_f32 v{ML+2*w}, v{ML+2*w}, v{RC+2}")
    for w in range(4): a(f"v_exp_f32 v{ML+2*w}, v{ML+2*w}")
    a("s_waitcnt lgkmcnt(0)")
    for w in range(4):
        op = "v_mul_f32" if w == 0 else "v_fmac_f32"
        a(f"{op} v{O0}, v{ML+2*w}, v{RD+2*w}\n{op} v{O1}, v{ML+2*w}, v{RD+2*w+1}\n{op} v{RC+3}, v{ML+2*w}, v{ML+2*w+1}")
    if not two:
        a(f"s_cmp_eq_u32 s{sSplit}, 0\ns_cbranch_scc1 L_poll0")
        for k in range(4): a(f"v_min_u32 v{RC+k}, -2, v{RC+k}")
    a(f"buffer_store_dwordx4 v[{RC}:{RC+3}], v{vL16}, s[{SWS}:{SWS+3}], s6 offen {rflags}")
    if diag:
        a("s_waitcnt vmcnt(0)")
        stamp(5)
    a("s_branch L_end")
    ck, mxx = T[12], T[13]
    W = Q
    def check(PR, younger):
        a(f"v_mov_b32 v{ck}, 0\nv_mov_b32 v{mxx}, v{RC+2}")
        for s in range(1, 8):
            a(f"s_waitcnt vmcnt({younger + 7 - s})")
            a(f"v_max3_u32 v{ck}, v{ck}, v{PR+4*s}, v{PR+4*s+1}\nv_max3_u32 v{ck}, v{ck}, v{PR+4*s+2}, v{PR+4*s+3}")
            a(f"v_max_f32 v{mxx}, v{mxx}, v{PR+4*s+2}")
        a(f"v_cmp_eq_u32 vcc, -1, v{ck}")
        a(f"v_sub_f32 v{W}, v{RC+2}, v{mxx}")
        for s in range(1, 8): a(f"v_sub_f32 v{W+s}, v{PR+4*s+2}, v{mxx}")
    def combine(PR):
        for s in range(8): a(f"v_exp_f32 v{W+s}, v{W+s}")
        r0, r1, sm = T[4], T[5], T[6]
        a(f"v_mul_f32 v{sm}, v{W}, v{RC+3}\nv_mul_f32 v{r0}, v{W}, v{O0}\nv_mul_f32 v{r1}, v{W}, v{O1}")
        for s in range(1, 8): a(f"v_fmac_f32 v{sm}, v{W+s}, v{PR+4*s+3}")
        a(f"v_rcp_f32 v{sm}, v{sm}")
        for s in range(1, 8):
            a(f"v_fmac_f32 v{r0}, v{W+s}, v{PR+4*s}\nv_fmac_f32 v{r1}, v{W+s}, v{PR+4*s+1}")
        a(f"v_mul_f32 v{r0}, v{r0}, v{sm}\nv_mul_f32 v{r1}, v{r1}, v{sm}")
        a(f"v_cvt_pk_bf16_f32 v{r0}, v{r0}, v{r1}")
        a(f"buffer_store_dword v{r0}, v{vOut}, s[{SOUT}:{SOUT+3}], 0 offen {oflags}")
    if pipe:
        a("L_poll0:")
        poll(PRS[1])
        check(PRS[0], 7)
        a("s_cbranch_vccz L_fin0")
        poll(PRS[0])
        check(PRS[1], 7)
        a("s_cbranch_vccnz L_poll0")
        combine(PRS[1])
        a("s_branch L_fin")
        a("L_fin0:")
        combine(PRS[0])
        a("L_fin:")
    else:
        a("L_again:")
        poll(PRS[0])
        a("L_poll0:")
        check(PRS[0], 0)
        a("s_cbranch_vccnz L_again")
        combine(PRS[0])
    if diag:
        a("s_waitcnt vmcnt(0)")
        stamp(6)
    a("L_end:")
    if diag:
        a("s_waitcnt vmcnt(0)\ns_mov_b64 exec, 1")
        a(f"s_getreg_b32 s94, hwreg(HW_REG_XCC_ID)\ns_mov_b32 s88, s{sIter}")
        a(f"s_mul_i32 s4, s95, {NW}\ns_add_u32 s4, s4, s{sW}\ns_lshl_b32 s4, s4, 6\ns_add_u32 s4, s4, 0x200000")
        for k in range(16):
            a(f"v_mov_b32 v{24+k}, s{64+2*k}")
        for k in range(4):
            a(f"buffer_store_dwordx4 v[{24+4*k}:{27+4*k}], off, s[{SWS}:{SWS+3}], s4 offset:{16*k}")
    a("L_exit:\ns_endpgm")
    body = a.finish()
    nv = (NV + 7) // 8 * 8
    txt = HDR + f"""; @launch grid=(256,1,1) block=({NW*64},1,1) lds={LDS_SZ}
.amdgcn_target "amdgcn-amd-amdhsa--gfx950"
.text
.globl {KN}
.p2align 8
.type {KN},@function
{KN}:
{body}
.section .rodata,"a"
.p2align 6
.amdhsa_kernel {KN}
  .amdhsa_next_free_vgpr {nv}
  .amdhsa_next_free_sgpr {NSGPR}
  .amdhsa_accum_offset {nv}
  .amdhsa_group_segment_fixed_size 0
  .amdhsa_kernarg_size 80
  .amdhsa_user_sgpr_count 2
  .amdhsa_user_sgpr_kernarg_segment_ptr 1
  .amdhsa_system_sgpr_workgroup_id_x 1
  .amdhsa_float_denorm_mode_32 3
.end_amdhsa_kernel
"""
    if two:
        c = Asm()
        c("s_cmp_ge_u32 s2, 128\ns_cbranch_scc1 C_end")
        c("s_load_dwordx2 s[8:9], s[0:1], 72\ns_load_dwordx2 s[12:13], s[0:1], 56")
        c(f"s_mov_b32 s10, {WS_SZ}\ns_mov_b32 s11, 0x20000\ns_mov_b32 s14, 32768\ns_mov_b32 s15, 0x20000")
        c("s_lshr_b32 s4, s2, 2\ns_lshl_b32 s4, s4, 15\ns_and_b32 s5, s2, 3\ns_lshl_b32 s5, s5, 10\ns_add_u32 s4, s4, s5\ns_lshl_b32 s6, s2, 8")
        c("v_lshlrev_b32 v1, 4, v0\nv_lshlrev_b32 v2, 2, v0")
        for s_ in range(1, 8): c(f"s_add_u32 s{16+s_}, s4, {s_*4096}")
        c("s_mov_b32 s16, s4\ns_waitcnt lgkmcnt(0)")
        for s_ in range(8): c(f"buffer_load_dwordx4 v[{8+4*s_}:{11+4*s_}], v1, s[8:11], s{16+s_} offen")
        for s_ in range(8):
            c(f"s_waitcnt vmcnt({7-s_})")
            c(f"v_mov_b32 v3, v10" if s_ == 0 else f"v_max_f32 v3, v3, v{10+4*s_}")
        for s_ in range(8): c(f"v_sub_f32 v{10+4*s_}, v{10+4*s_}, v3")
        for s_ in range(8): c(f"v_exp_f32 v{10+4*s_}, v{10+4*s_}")
        for s_ in range(8):
            op = "v_mul_f32" if s_ == 0 else "v_fmac_f32"
            c(f"{op} v4, v{10+4*s_}, v{11+4*s_}")
        c("v_rcp_f32 v4, v4")
        for s_ in range(8):
            op = "v_mul_f32" if s_ == 0 else "v_fmac_f32"
            c(f"{op} v5, v{10+4*s_}, v{8+4*s_}\n{op} v6, v{10+4*s_}, v{9+4*s_}")
        c("v_mul_f32 v5, v5, v4\nv_mul_f32 v6, v6, v4\nv_cvt_pk_bf16_f32 v5, v5, v6")
        c("buffer_store_dword v5, v2, s[12:15], s6 offen")
        c("C_end:\ns_endpgm")
        L = f"; @launch grid=(256,1,1) block=({NW*64},1,1) lds={LDS_SZ}"
        txt = txt.replace(L, f"; @launch kernel={KN} grid=(256,1,1) block=({NW*64},1,1) lds={LDS_SZ}\n; @launch kernel=combine_kernel grid=(128,1,1) block=(64,1,1) lds=0")
        txt += """
.text
.globl combine_kernel
.p2align 8
.type combine_kernel,@function
combine_kernel:
""" + c.finish() + """
.section .rodata,"a"
.p2align 6
.amdhsa_kernel combine_kernel
  .amdhsa_next_free_vgpr 40
  .amdhsa_next_free_sgpr 32
  .amdhsa_accum_offset 40
  .amdhsa_group_segment_fixed_size 0
  .amdhsa_kernarg_size 80
  .amdhsa_user_sgpr_count 2
  .amdhsa_user_sgpr_kernarg_segment_ptr 1
  .amdhsa_system_sgpr_workgroup_id_x 1
  .amdhsa_float_denorm_mode_32 3
.end_amdhsa_kernel
"""
    return txt, len(a.ins), a.nops

if __name__ == "__main__":
    sys.path.insert(0, "bench")
    from build import build
    kw = eval("dict(" + (sys.argv[2] if len(sys.argv) > 2 else "") + ")")
    txt, n, nops = gen(**kw)
    p = f"bench/{sys.argv[1]}.s"
    open(p, "w").write(txt)
    print("instrs", n, "nop states", nops)
    print(build(p))
```

```python
import sys
from asmlib import Asm
KN = "standalone__kv_cache_quant_int4_int2_kv_with_per_channel_or_per_token_scales__decode_kernel"
HDR = open("standalone__kv_cache_quant_int4_int2_kv_with_per_channel_or_per_token_scales__decode.s.ref").read().split("; Override launch")[0]

def gen(LEAD=14, nK=5, nV=5, n0=8, wide_from=12, kfirst=8, flags="nt", pflags="nt", qflags="", oflags="sc1",
        diag=0, notail=False, vtouch=0, cpf=2, bar_at=None, dK=(1,0,1,0,1,0,1,0), dV=(1,0,1,0,1,0,1,0), hi=0, w0=13, dec=1,
        rst="sc1", rld="sc1", nset=2, early=False, gbits=(12,13), wbits=(11,14), fast=0, tw=None, mid=8, xw=None):
    NW = 4
    a = Asm()
    assert 8 <= LEAD <= 15
    TAGC = 0x6B43A9B5
    PITCH = 272
    WSCR = 16 * PITCH
    LDS_ML = NW * WSCR
    LDS_P = LDS_ML + 512
    LDS_Q = LDS_P + 12288
    LDS_Z = LDS_Q + 1024
    LDS_SZ = LDS_Z + 8192
    EPOFF = 0x100000
    WS_SZ = 0x400000 if diag else 0x110000
    OOB = 0x8000000
    SK, SV, SQ, SKS, SKZ, SVS, SVZ, SOUT, SN1, SWS, SN2 = 8, 12, 16, 20, 24, 28, 32, 36, 40, 44, 88
    sW, sBH, sSplit, sT, sT2, sOff = 3, 48, 49, 50, 51, 52
    sLog2e, sScale, sMask = 53, 54, 55
    sU1, sU2, sIter, sReg, sCons = 56, 57, 59, 60, 61
    sPK, sPV = 62, 63
    sA = 4; sB = 6
    sE1 = 64
    sQl, sRow, sTag, sEp, sRec, sWG = 66, 67, 68, 69, 70, 71
    sD = 72
    SRR = 76
    sPC = 84
    NSGPR = 92
    sRegQ = 2
    vOff, vLane, vWr, vPk, vPv, vMk0, vMk1, vRd = 1, 2, 3, 4, 5, 6, 7, 8
    vPa, vPb = 9, 12
    vM, vL = 10, 11
    vVz, vVsH = 13, 14
    vL16 = 15
    RAW = 16
    vDg = 26
    vZr = 27
    Q = 28; NZ = 44; KS = 52; ACC = 60
    T = list(range(68, 92))
    AO = 92; VB = 108; RING = 124
    TA = RING + 64
    vLds, vMLw, vOr, vMLr, vOut, pq, vZw, vTch = TA, TA + 1, TA + 2, TA + 3, TA + 4, TA + 5, TA + 6, TA + 7
    NV = TA + 8

    a(f"s_cmp_ge_u32 s2, 256\ns_cbranch_scc1 L_exit")
    def stamp(k):
        if diag:
            a(f"s_memrealtime s[{sD}:{sD+1}]\ns_waitcnt lgkmcnt(0)\nv_writelane_b32 v{vDg}, s{sD}, {k}")
    if diag: a(f"v_mov_b32 v{vDg}, 0\ns_mov_b32 s75, 0\ns_mov_b32 s{sWG}, s2")
    stamp(0)
    if fast:
        KA = 76
        c_, gg = T[22], T[23]
        a(f"s_load_dwordx16 s[{KA}:{KA+15}], s[0:1], 0")
        a(f"v_lshrrev_b32 v{T[0]}, 6, v0\nv_and_b32 v{c_}, 15, v0")
        a(f"v_readfirstlane_b32 s{sW}, v{T[0]}")
        a(f"v_bfe_u32 v{gg}, v0, 4, 2")
        a(f"s_lshl_b32 s{sReg}, s2, 19\ns_and_b32 s{sT}, s2, 3\ns_lshl_b32 s{sT}, s{sT}, 17")
        a(f"v_lshlrev_b32 v{T[2]}, 12, v{gg}\nv_lshl_or_b32 v{vOff}, v{c_}, 4, v{T[2]}")
        a(f"s_and_b32 s{sSplit}, s2, 7\ns_lshr_b32 s{sBH}, s2, 3")
        a(f"s_xor_b32 s{sRegQ}, s{sReg}, s{sT}")
        for b, wb in enumerate(wbits):
            m = (1 << wb) | (1 << (15 + b))
            a(f"s_bitcmp1_b32 s{sW}, {b}\ns_cselect_b32 s{sT2}, {m}, 0\ns_xor_b32 s{sRegQ}, s{sRegQ}, s{sT2}")
        a(f"s_mov_b32 s{SK+2}, 0x8000000\ns_mov_b32 s{SK+3}, 0x20000")
        def pf():
            a("; each wave pulls one 128-B line of the later code into L2 (value unused)")
            a(f"s_getpc_b64 s[{sA}:{sA+1}]\nL_pc:")
            a(f"s_lshl2_add_u32 s{sT}, s{sBH}, s{sW}\ns_lshl_b32 s{sT}, s{sT}, 7\ns_and_b32 s{sT}, s{sT}, 0x1f80\ns_min_u32 s{sT}, s{sT}, L_exit-L_pc")
            a(f"s_load_dword s{sPK}, s[{sA}:{sA+1}], s{sT}")
        if fast == 2: pf()
        a("s_waitcnt lgkmcnt(0)")
        stamp(1)
        a(f"s_mov_b64 s[{SK}:{SK+1}], s[{KA+2}:{KA+3}]")
        def rest():
            a(f"s_lshl_b32 s{sOff}, s{sBH}, 10\ns_lshl_b32 s{sT2}, s{sW}, 8\ns_add_u32 s{sOff}, s{sOff}, s{sT2}\ns_add_u32 s{sQl}, s{sT2}, {LDS_Q}")
            if fast == 1: pf()
            a(f"s_load_dwordx2 s[{SWS}:{SWS+1}], s[0:1], 72")
            for srd, w, sz in ((SKS, 6, 0x100000), (SKZ, 8, 0x100000), (SVS, 10, 0x80000), (SVZ, 12, 0x80000), (SQ, 0, 32768)):
                a(f"s_mov_b64 s[{srd}:{srd+1}], s[{KA+w}:{KA+w+1}]\ns_mov_b32 s{srd+2}, {sz}\ns_mov_b32 s{srd+3}, s{SK+3}")
            a(f"v_and_b32 v{vLane}, 63, v0\nv_lshlrev_b32 v{vL16}, 4, v{vLane}")
            a(f"s_lshl_b32 s{sT2}, s{sW}, 10\ns_lshr_b32 s{sA}, s{sReg}, 7\ns_add_u32 s{sA}, s{sA}, s{sT2}\ns_add_u32 s{sB}, s{sT2}, {LDS_P}")
            a(f"s_lshl_b32 s{sT2}, s{sW}, 9\ns_lshr_b32 s{sA+1}, s{sReg}, 8\ns_add_u32 s{sA+1}, s{sA+1}, s{sT2}\ns_add_u32 s{sB+1}, s{sT2}, {LDS_P + 8192}")
            a(f"s_mov_b32 m0, s{sB}\ns_xor_b32 s{sU1}, s{sRegQ}, {1 << 15}")

    else:
        a(f"v_lshrrev_b32 v{T[0]}, 6, v0")
        for srd, off in ((SK, 8), (SKS, 24), (SKZ, 32), (SVS, 40), (SVZ, 48), (SQ, 0), (SV, 16)):
            a(f"s_load_dwordx2 s[{srd}:{srd+1}], s[0:1], {off}")
        a(f"v_readfirstlane_b32 s{sW}, v{T[0]}")
        if hi == 1: a(f"s_and_b32 s{sBH}, s2, 31\ns_lshr_b32 s{sSplit}, s2, 5")
        elif hi == 2:
            a(f"s_bfe_u32 s{sSplit}, s2, {3 | (2 << 16)}\ns_and_b32 s{sT}, s2, 1\ns_lshl_b32 s{sT}, s{sT}, 2\ns_or_b32 s{sSplit}, s{sSplit}, s{sT}")
            a(f"s_bfe_u32 s{sBH}, s2, {1 | (2 << 16)}\ns_lshr_b32 s{sT}, s2, 5\ns_lshl_b32 s{sT}, s{sT}, 2\ns_or_b32 s{sBH}, s{sBH}, s{sT}")
        else: a(f"s_and_b32 s{sSplit}, s2, 7\ns_lshr_b32 s{sBH}, s2, 3")
        a(f"s_lshl_b32 s{sOff}, s{sBH}, 10\ns_lshl_b32 s{sT2}, s{sW}, 8\ns_add_u32 s{sOff}, s{sOff}, s{sT2}\ns_add_u32 s{sQl}, s{sT2}, {LDS_Q}")
        if cpf:
            a(f"s_getpc_b64 s[{sPC}:{sPC+1}]\nL_pc:")
            a(f"s_lshr_b32 s{sT}, s2, 3\ns_lshl_b32 s{sT}, s{sT}, 2\ns_add_u32 s{sT}, s{sT}, s{sW}\ns_lshl_b32 s{sT}, s{sT}, 7\ns_min_u32 s{sT}, s{sT}, L_exit-L_pc")
            a(f"s_load_dword s{sPC+2}, s[{sPC}:{sPC+1}], s{sT}")
        a(f"v_and_b32 v{vLane}, 63, v0")
        for srd, sz in ((SK, 0x8000000), (SV, 0x8000000), (SQ, 32768), (SKS, 0x100000), (SKZ, 0x100000), (SVS, 0x80000), (SVZ, 0x80000)):
            a(f"s_mov_b32 s{srd+2}, {sz}\ns_mov_b32 s{srd+3}, 0x20000")
        a(f"s_lshl_b32 s{sT}, s{sBH}, 22\ns_lshl_b32 s{sReg}, s{sSplit}, 19\ns_or_b32 s{sReg}, s{sReg}, s{sT}")
        for b, wb in enumerate(wbits):
            m = (1 << wb) | (1 << (15 + b))
            a(f"s_bfe_i32 s{sT2}, s{sW}, {b | (1 << 16)}\ns_and_b32 s{sT2}, s{sT2}, {m}\ns_xor_b32 s{sRegQ}, s{sReg if b == 0 else sRegQ}, s{sT2}")
        a(f"s_and_b32 s{sT2}, s{sSplit}, 3\ns_lshl_b32 s{sT2}, s{sT2}, 17\ns_xor_b32 s{sRegQ}, s{sRegQ}, s{sT2}")
        a(f"s_xor_b32 s{sU1}, s{sRegQ}, {1 << 15}")
        c_, gg = T[22], T[23]
        a(f"v_and_b32 v{c_}, 15, v{vLane}\nv_lshrrev_b32 v{gg}, 4, v{vLane}")
        if gbits[1] == gbits[0] + 1:
            a(f"v_lshlrev_b32 v{T[2]}, {gbits[0]}, v{gg}")
        else:
            a(f"v_and_b32 v{T[3]}, 1, v{gg}\nv_lshlrev_b32 v{T[2]}, {gbits[0]}, v{T[3]}\nv_lshrrev_b32 v{T[3]}, 1, v{gg}\nv_lshl_or_b32 v{T[2]}, v{T[3]}, {gbits[1]}, v{T[2]}")
        a(f"v_lshl_or_b32 v{vOff}, v{c_}, 4, v{T[2]}")
        a(f"v_lshlrev_b32 v{vL16}, 4, v{vLane}")
        if vtouch and vtouch not in (1, 3):
            assert (4 * vtouch[1]) << vtouch[0] == 1 << 19
            a(f"s_lshl_b32 s{sT2}, s{sW}, 17\nv_lshl_add_u32 v{T[1]}, v{vLane}, {vtouch[0]}, s{sT2}")
        a(f"s_lshl_b32 s{sT2}, s{sW}, 10\ns_lshr_b32 s{sA}, s{sReg}, 7\ns_add_u32 s{sA}, s{sA}, s{sT2}\ns_add_u32 s{sB}, s{sT2}, {LDS_P}")
        a(f"s_lshl_b32 s{sT2}, s{sW}, 9\ns_lshr_b32 s{sA+1}, s{sReg}, 8\ns_add_u32 s{sA+1}, s{sA+1}, s{sT2}\ns_add_u32 s{sB+1}, s{sT2}, {LDS_P + 8192}")
        a(f"s_mov_b32 m0, s{sB}")
        a("s_waitcnt lgkmcnt(0)")
        stamp(1)

    def ioff(i): return ((i & 1) << 8) | ((i >> 1) << 9)
    def ld(slot, srd, sb, p):
        return f"buffer_load_dwordx4 v[{RING+4*slot}:{RING+4*slot+3}], v{vOff}, s[{srd}:{srd+3}], s{sb} offen offset:{ioff(p)} {flags}"
    def ld0(k): return ld(k, SK, sRegQ if k < 8 else sU1, k & 7)
    for k in range(kfirst): a(ld0(k))
    if fast:
        assert kfirst <= 8 and gbits == (12, 13) and not hi and not vtouch
        rest()
    a(f"buffer_load_dwordx4 v{vL16}, s[{SKS}:{SKS+3}], s{sA} offen {pflags} lds")
    a(f"s_add_u32 m0, s{sB}, 4096")
    a(f"buffer_load_dwordx4 v{vL16}, s[{SKZ}:{SKZ+3}], s{sA} offen {pflags} lds")
    a(f"s_mov_b32 exec_hi, 0\ns_mov_b32 m0, s{sB+1}")
    a(f"buffer_load_dwordx4 v{vL16}, s[{SVS}:{SVS+3}], s{sA+1} offen {pflags} lds")
    a(f"s_add_u32 m0, s{sB+1}, 2048")
    a(f"buffer_load_dwordx4 v{vL16}, s[{SVZ}:{SVZ+3}], s{sA+1} offen {pflags} lds")
    a(f"s_mov_b32 exec_lo, 0xffff\ns_mov_b32 m0, s{sQl}")
    a(f"buffer_load_dwordx4 v{vL16}, s[{SQ}:{SQ+3}], s{sOff} offen {qflags} lds")
    nx = 0
    if vtouch == 1:
        a("s_mov_b32 exec_lo, 1")
        a(f"buffer_load_dword v{vTch}, off, s[{SV}:{SV+3}], s{sRegQ} nt")
    elif vtouch and vtouch != 3:
        sh, nl = vtouch
        a(f"s_mov_b32 exec_lo, {(1 << nl) - 1}")
        a(f"buffer_load_dword v{vTch}, v{T[1]}, s[{SV}:{SV+3}], s{sReg} offen nt")
        a(f"buffer_load_dword v{vTch}, v{T[1]}, s[{SK}:{SK+3}], s{sReg} offen nt")
    a("s_mov_b64 exec, -1")
    for k in range(kfirst, n0): a(ld0(k))
    if fast:
        for srd, w, sz in ((SV, 4, 0x8000000), (SOUT, 14, 32768), (SN1, 2, 0x8000000)):
            a(f"s_mov_b64 s[{srd}:{srd+1}], s[{KA+w}:{KA+w+1}]\ns_mov_b32 s{srd+2}, {sz}\ns_mov_b32 s{srd+3}, s{SK+3}")
        a(f"s_mov_b32 s{SN2+2}, s{SK+2}\ns_mov_b32 s{SN2+3}, s{SK+3}\ns_mov_b32 s{SWS+2}, {WS_SZ}\ns_mov_b32 s{SWS+3}, s{SK+3}")
    else:
        for srd, off in ((SWS, 72), (SOUT, 56), (SN1, 8), (SN2, 8)):
            a(f"s_load_dwordx2 s[{srd}:{srd+1}], s[0:1], {off}")
        for srd, sz in ((SN1, 0x8000000), (SN2, 0x8000000), (SOUT, 32768), (SWS, WS_SZ)):
            a(f"s_mov_b32 s{srd+2}, {sz}\ns_mov_b32 s{srd+3}, 0x20000")
    a(f"v_lshlrev_b32 v{vPk}, 3, v{c_}")
    a(f"v_lshrrev_b32 v{vPv}, 8, v{T[2]}\nv_and_b32 v{T[3]}, 3, v{vLane}\nv_lshl_or_b32 v{vPv}, v{T[3]}, 1, v{vPv}")
    a(f"s_mul_i32 s{sT2}, s{sW}, {WSCR}")
    a(f"v_mul_u32_u24 v{vWr}, {4*PITCH}, v{gg}\nv_add3_u32 v{vWr}, v{vWr}, v{vPk}, s{sT2}")
    a(f"v_mul_u32_u24 v{vRd}, {PITCH}, v{c_}\nv_lshl_add_u32 v{vRd}, v{gg}, 4, v{vRd}\nv_add_u32 v{vRd}, s{sT2}, v{vRd}")
    a(f"v_bfe_u32 v{pq}, v{vLane}, 2, 2\nv_lshlrev_b32 v{pq}, 8, v{pq}\nv_lshl_or_b32 v{pq}, v{gg}, 4, v{pq}")
    a(f"s_lshl_b32 s{sT}, s{sW}, 11\ns_add_u32 s{sT}, s{sT}, {LDS_Z}")
    a(f"v_lshrrev_b32 v{vZr}, 2, v{vLane}\nv_lshl_add_u32 v{vZr}, v{vZr}, 3, s{sT}\nv_mov_b32 v{vZw}, v{vZr}")
    a(f"s_mov_b32 s{sLog2e}, 0x3fb8aa3b\ns_mov_b32 s{sScale}, 0x3db504f3\ns_mov_b32 s{sE1}, 0x11111111\ns_mov_b32 s{sE1+1}, 0x11111111\ns_mov_b32 s{sMask}, 0xffff0000")
    a(f"s_mov_b32 s{sIter}, 0")
    if xw:
        a(f"s_getreg_b32 s{sT}, hwreg(HW_REG_XCC_ID)\ns_bitcmp1_b32 s{sT}, 2\ns_cselect_b32 s58, {xw[1]}, {xw[0]}")
    a(f"s_lshl_b32 s{sRow}, s{sBH}, 15\ns_lshl_b32 s{sT}, s{sW}, 10\ns_add_u32 s{sRow}, s{sRow}, s{sT}")
    a(f"s_lshl_b32 s{sRec}, s{sSplit}, 12\ns_add_u32 s{sRec}, s{sRec}, s{sRow}")
    a(f"s_mul_i32 s{sEp}, s{sBH}, 1280\ns_add_u32 s{sEp}, s{sEp}, {EPOFF}")
    for s in range(1, 8): a(f"s_xor_b32 s{SRR+s}, s{sRec}, {s*4096}")
    a(f"s_mov_b32 s{SRR}, 7\ns_and_b32 s{sCons}, s{sBH}, 7\ns_xor_b32 s{sCons}, s{sCons}, s{sSplit}")
    a(f"v_and_b32 v{T[6]}, 1, v{vLane}\nv_lshlrev_b32 v{T[6]}, 4, v{T[6]}")
    a(f"v_mov_b32 v{T[7]}, 0xffff\nv_lshlrev_b32 v{T[7]}, v{T[6]}, v{T[7]}")
    a(f"v_bfe_i32 v{T[6]}, v{vLane}, 1, 1")
    a(f"v_and_b32 v{vMk1}, v{T[6]}, v{T[7]}\nv_xor_b32 v{vMk0}, v{vMk1}, v{T[7]}")
    a(f"v_mov_b32 v{vM}, 0xff800000\nv_mov_b32 v{vL}, 0")
    for k in range(8): a(f"v_mov_b32 v{ACC+k}, 0")
    a(f"v_lshlrev_b32 v{vLds}, 4, v{c_}\nv_lshl_or_b32 v{vLds}, v{gg}, 9, v{vLds}\nv_add_u32 v{vLds}, s{sT2}, v{vLds}")
    a(f"v_lshlrev_b32 v{T[0]}, 3, v{vLane}")
    a(f"s_lshl_b32 s{sT}, s{sW}, 3\ns_add_u32 s{sT}, s{sT}, {LDS_ML}")
    a(f"v_add_u32 v{vMLw}, s{sT}, v{T[0]}")
    a(f"s_lshl_b32 s{sT}, s{sW}, 9")
    a(f"v_add_u32 v{vOr}, s{sT}, v{T[0]}")
    a(f"s_lshl_b32 s{sT}, s{sW}, 5\ns_add_u32 s{sT}, s{sT}, {LDS_ML}")
    a(f"v_mov_b32 v{vMLr}, s{sT}")
    a(f"v_lshl_add_u32 v{vOut}, v{vLane}, 2, s{sOff}")
    a("s_waitcnt lgkmcnt(0)")
    a(f"s_load_dword s{sTag}, s[{SWS}:{SWS+1}], s{sEp}")
    if bar_at is None: bar_at = LEAD
    assert n0 <= bar_at <= LEAD
    def join(issued):
        a(f"s_waitcnt vmcnt({issued - kfirst})")
        stamp(10)
        a("s_barrier")
        stamp(11)
    for k in range(n0, LEAD):
        if k == bar_at: join(k)
        a(f"s_waitcnt vmcnt({max(nK, (n0 if w0 is None else w0) - dec * (k - n0)) - 1})")
        if diag and k == n0: stamp(2)
        a(ld0(k))
    if bar_at == LEAD: join(LEAD)

    tp = [T[0], T[2], T[4], T[6]]
    D = [T[16], T[20]]
    Z = T[8:12]; U = T[12:14]
    def expand():
        for hs in range(2):
            for r in range(2):
                z = RAW + 4 + 2 * hs + r; s = RAW + 2 * hs + r
                a(f"v_lshlrev_b32 v{NZ+hs*4+2*r}, 16, v{z}\nv_and_b32 v{NZ+hs*4+2*r+1}, s{sMask}, v{z}")
                a(f"v_and_b32 v{KS+hs*4+2*r}, 0xffff, v{s}\nv_and_b32 v{KS+hs*4+2*r+1}, s{sMask}, v{s}")
    def k_params(su):
        a(f"s_bfe_u32 s{sT}, s{su}, {15 | (4 << 16)}\ns_lshl_b32 s{sPK}, s{sT}, 8")
        a(f"v_add_u32 v{vPa}, s{sPK}, v{vPk}")
        a(f"ds_read_b64 v[{RAW}:{RAW+1}], v{vPa} offset:{LDS_P}")
        a(f"ds_read_b64 v[{RAW+2}:{RAW+3}], v{vPa} offset:{LDS_P+128}")
        a(f"ds_read_b64 v[{RAW+4}:{RAW+5}], v{vPa} offset:{LDS_P+4096}")
        a(f"ds_read_b64 v[{RAW+6}:{RAW+7}], v{vPa} offset:{LDS_P+4096+128}")
    def a_read():
        for s in range(4):
            a(f"ds_read_b128 v[{AO+4*s}:{AO+4*s+3}], v{vRd} offset:{64*s}")
    def qk():
        for s in range(4):
            a(f"v_mfma_f32_16x16x32_bf16 v[{Z[0]}:{Z[3]}], v[{AO+4*s}:{AO+4*s+3}], v[{Q+4*s}:{Q+4*s+3}], " + ("0" if s == 0 else f"v[{Z[0]}:{Z[3]}]"))
    def rnd():
        for k in range(2): a(f"v_cvt_pk_bf16_f32 v{U[k]}, v{Z[2*k]}, v{Z[2*k+1]}")
        for k in range(2): a(f"v_lshlrev_b32 v{Z[2*k]}, 16, v{U[k]}\nv_and_b32 v{Z[2*k+1]}, s{sMask}, v{U[k]}")
        for k in range(4): a(f"v_mul_f32 v{Z[k]}, s{sScale}, v{Z[k]}")
        for k in range(2): a(f"v_cvt_pk_bf16_f32 v{U[k]}, v{Z[2*k]}, v{Z[2*k+1]}")
        a(f"s_mov_b64 exec, s[{sE1}:{sE1+1}]\nds_write_b64 v{vZw}, v[{U[0]}:{U[1]}]\ns_mov_b64 exec, -1")
        a(f"v_max3_f32 v{vM}, v{vM}, v{Z[0]}, v{Z[1]}\nv_max3_f32 v{vM}, v{vM}, v{Z[2]}, v{Z[3]}")
        a(f"v_add_u32 v{vZw}, 128, v{vZw}")
    def ahead(half, i, s1, s2):
        k = i + LEAD
        return ld((half * 8 + k) % 16, s1 if k < 16 else s2, sU1 if k < 16 else sU2, k & 7)
    if vtouch == 3:
        a(f"s_cmp_lg_u32 s{sW}, 0\ns_cbranch_scc1 L_not\ns_mov_b64 exec, 1")
        a(f"buffer_load_dword v{vTch}, off, s[{SV}:{SV+3}], s{sRegQ} nt")
        a("s_mov_b64 exec, -1\nL_not:")
    k_params(sRegQ)
    for s in range(4):
        a(f"ds_read_b128 v[{Q+4*s}:{Q+4*s+3}], v{pq} offset:{LDS_Q + 64*s}")
    klab = [0]
    if tw: a("s_mov_b32 vcc_hi, 0")
    def k_unit(half):
        if tw: a(f"s_cmp_lt_u32 s{sIter}, {tw}\ns_cselect_b32 vcc_lo, 1, 0")
        a(f"s_add_u32 s{sT2}, s{sIter}, 2\ns_and_b32 s{sT}, s{sT2}, 15\ns_lshl_b32 s{sU2}, s{sT}, 15\ns_xor_b32 s{sU2}, s{sU2}, s{sRegQ}")
        a(f"s_cmp_lt_u32 s{sT2}, 16\ns_cselect_b64 s[{SN2}:{SN2+1}], s[{SK}:{SK+1}], s[{SV}:{SV+1}]")
        if diag and half == 0:
            for kk, it in ((7, 2), (8, 8)):
                a(f"s_cmp_lg_u32 s{sIter}, {it}\ns_cbranch_scc1 L_nost{kk}")
                stamp(kk)
                a(f"L_nost{kk}:")
        for i in range(8):
            hs, j = i & 1, i >> 1
            t = tp[i & 3]; d = D[i & 1]; src = RING + 4 * (half * 8 + i)
            if tw:
                klab[0] += 1
                a(f"s_waitcnt vmcnt({mid-1})\ns_cbranch_vccz L_k{klab[0]}\ns_waitcnt vmcnt({nK-1+dK[i]})\nL_k{klab[0]}:")
            else:
                a(f"s_waitcnt vmcnt({nK-1+dK[i]})")
            a(ahead(half, i, SN1, SN2))
            for k in range(4): a(f"v_cvt_f32_i32 v{d+k}, v{src+k}")
            if i == 0:
                a("s_waitcnt lgkmcnt(0)")
                qk()
                expand()
            for k in (0, 2):
                a(f"v_pk_add_f32 v[{d+k}:{d+k+1}], v[{d+k}:{d+k+1}], v[{NZ+hs*4+k}:{NZ+hs*4+k+1}] neg_lo:[0,1] neg_hi:[0,1]")
            for r in range(2):
                a(f"v_cvt_pk_bf16_f32 v{t+r}, v{d+2*r}, v{d+2*r+1}")
            for k in range(4):
                a(f"v_dot2_f32_bf16 v{d+k}, v{t+(k>>1)}, v{KS+hs*4+k}, 0")
            for r in range(2):
                a(f"v_cvt_pk_bf16_f32 v{t+r}, v{d+2*r}, v{d+2*r+1}")
            a(f"ds_write_b64 v{vWr}, v[{t}:{t+1}] offset:{j*PITCH + hs*128}")
            if i == 1:
                if half == 0: a(f"s_cmp_eq_u32 s{sIter}, 0\ns_cbranch_scc1 L_norn")
                rnd()
                if half == 0: a("L_norn:")
            if i == 3: k_params(sU1)
        a_read()
        a(f"s_add_u32 s{sIter}, s{sIter}, 1\ns_mov_b32 s{sU1}, s{sU2}\ns_mov_b64 s[{SN1}:{SN1+1}], s[{SN2}:{SN2+1}]")
    a("L_kloop:")
    k_unit(0)
    k_unit(1)
    a(f"s_cmp_lt_u32 s{sIter}, 16\ns_cbranch_scc1 L_kloop")
    def v_params(su):
        a(f"s_bfe_u32 s{sPV}, s{su}, {8 | (11 << 16)}")
        a(f"v_add_u32 v{vPb}, s{sPV}, v{vPv}")
        a(f"ds_read_b64 v[{RAW}:{RAW+1}], v{vZr}")
        a(f"ds_read_u16 v{RAW+8}, v{vPb} offset:{LDS_P+8192}")
        a(f"ds_read_u16 v{RAW+9}, v{vPb} offset:{LDS_P+10240}")
        a(f"v_add_u32 v{vZr}, 128, v{vZr}")
    a(f"s_add_u32 s{sTag}, s{sTag}, {TAGC}\ns_mov_b32 s{sIter}, 0\ns_mov_b64 vcc, 1")
    a("s_waitcnt lgkmcnt(0)")
    qk()
    v_params(sRegQ)
    rnd()
    t0 = T[5]
    for sw in ("v_permlane32_swap_b32", "v_permlane16_swap_b32"):
        a(f"v_mov_b32 v{t0}, v{vM}\n{sw} v{vM}, v{t0}\nv_max_f32 v{vM}, v{vM}, v{t0}")
    a(f"v_cvt_pk_bf16_f32 v{vM}, v{vM}, v{vM}\nv_lshlrev_b32 v{vM}, 16, v{vM}\nv_mul_f32 v{vM}, s{sLog2e}, v{vM}")
    stamp(9)
    PZ = [T[0], T[2]]; PA = [AO + 2 * j for j in range(4)]
    nlab = [0]
    def v_unit(half):
        def v_deq(i):
            hs, j = i & 1, i >> 1
            b = j & 1; d = D[i & 1]; src = RING + 4 * (half * 8 + i)
            if hs == 0:
                a(f"v_mov_b32_dpp v{PZ[b]}, v{vVz} row_newbcast:{j} row_mask:0xf bank_mask:0xf")
            nlab[0] += 1
            a(f"s_waitcnt vmcnt({LEAD-1})\ns_cbranch_vccz L_w{nlab[0]}\ns_waitcnt vmcnt({nV-1+dV[i]})\nL_w{nlab[0]}:")
            a(ahead(half, i, SV, SV))
            for kk in range(4): a(f"v_cvt_f32_i32 v{d+kk}, v{src+kk}")
            for kk in (0, 2):
                a(f"v_pk_add_f32 v[{d+kk}:{d+kk+1}], v[{d+kk}:{d+kk+1}], v[{PZ[b]}:{PZ[b]+1}] op_sel:[0,0] op_sel_hi:[1,0] neg_lo:[0,1] neg_hi:[0,1]")
            for r in range(2):
                a(f"v_cvt_pk_bf16_f32 v{VB+2*i+r}, v{d+2*r}, v{d+2*r+1}")
        def v_mma(i):
            hs, j = i & 1, i >> 1
            d = ACC + 4 * hs
            a(f"v_mfma_f32_16x16x16_bf16 v[{d}:{d+3}], v[{PA[j]}:{PA[j]+1}], v[{VB+2*i}:{VB+2*i+1}], v[{d}:{d+3}]")
        a(f"s_add_u32 s{sT2}, s{sIter}, 2\ns_lshl_b32 s{sU2}, s{sT2}, 15\ns_xor_b32 s{sU2}, s{sU2}, s{sRegQ}\ns_cmp_lt_u32 s{sT2}, 16\ns_cselect_b32 s{sU2}, s{sU2}, {OOB}")
        a(f"s_cmp_lt_u32 s{sIter}, {wide_from if not xw else 's58'}\ns_cselect_b32 vcc_lo, 1, 0")
        a("s_waitcnt lgkmcnt(0)")
        for k in range(2): a(f"v_lshlrev_b32 v{Z[2*k]}, 16, v{RAW+k}\nv_and_b32 v{Z[2*k+1]}, s{sMask}, v{RAW+k}")
        a(f"v_lshlrev_b32 v{vVz}, 16, v{RAW+9}\nv_lshlrev_b32 v{vVsH}, 16, v{RAW+8}")
        for k in range(4): a(f"v_fma_f32 v{Z[k]}, v{Z[k]}, s{sLog2e}, -v{vM}")
        v_deq(0)
        for k in range(4): a(f"v_exp_f32 v{Z[k]}, v{Z[k]}")
        v_params(sU1)
        v_deq(1)
        a(f"v_add_f32 v{t0}, v{Z[0]}, v{Z[1]}\nv_add_f32 v{vL}, v{vL}, v{Z[2]}\nv_add_f32 v{vL}, v{vL}, v{Z[3]}\nv_add_f32 v{vL}, v{vL}, v{t0}")
        for k in range(4):
            a(f"v_mul_f32_dpp v{Z[k]}, v{vVsH}, v{Z[k]} row_newbcast:{k} row_mask:0xf bank_mask:0xf")
        for k in range(4): a(f"v_cvt_pk_bf16_f32 v{Z[k]}, v{Z[k]}, v{Z[k]}")
        for j in range(4): a(f"v_and_b32 v{PA[j]}, v{vMk0}, v{Z[j]}\nv_and_b32 v{PA[j]+1}, v{vMk1}, v{Z[j]}")
        v_mma(0)
        for i in range(1, 8):
            if i + 1 < 8: v_deq(i + 1)
            v_mma(i)
        a(f"s_add_u32 s{sIter}, s{sIter}, 1\ns_mov_b32 s{sU1}, s{sU2}")
    a("L_vloop:")
    v_unit(0)
    v_unit(1)
    a(f"s_cmp_lt_u32 s{sIter}, 16\ns_cbranch_scc1 L_vloop")
    stamp(3)
    for sw in ("v_permlane32_swap_b32", "v_permlane16_swap_b32"):
        a(f"v_mov_b32 v{T[0]}, v{vL}\n{sw} v{vL}, v{T[0]}\nv_add_f32 v{vL}, v{vL}, v{T[0]}")
    a(f"ds_write_b128 v{vLds}, v[{ACC}:{ACC+3}]\nds_write_b128 v{vLds}, v[{ACC+4}:{ACC+7}] offset:256")
    a("s_mov_b64 exec, 0x1111")
    a(f"ds_write_b64 v{vMLw}, v[{vM}:{vL}]")
    a("s_mov_b64 exec, -1")
    if early:
        a(f"s_cmp_lg_u32 s{sCons}, 0\ns_cbranch_scc1 L_red")
        for s_ in range(1, 8):
            a(f"buffer_load_dwordx4 v[{RING-4+4*s_}:{RING-4+4*s_+3}], v{vL16}, s[{SWS}:{SWS+3}], s{SRR+s_} offen {rld}")
        a("L_red:")
    a("s_waitcnt lgkmcnt(0)\ns_barrier")
    stamp(4)
    if notail: a("s_branch L_end")
    RD = Q; ML = Q + 8
    a(f"ds_read_b128 v[{ML}:{ML+3}], v{vMLr}\nds_read_b128 v[{ML+4}:{ML+7}], v{vMLr} offset:16")
    for w in range(4):
        a(f"ds_read_b64 v[{RD+2*w}:{RD+2*w+1}], v{vOr} offset:{w*WSCR}")
    RC = T[8]
    O0, O1 = RC, RC + 1
    PRS = [RING - 4, RING + 28, NV - 4, NV + 24][:nset]
    NV += 28 * max(0, nset - 2)
    def poll(PR):
        for s in range(1, 8):
            a(f"buffer_load_dwordx4 v[{PR+4*s}:{PR+4*s+3}], v{vL16}, s[{SWS}:{SWS+3}], s{SRR+s} offen {rld}")
        if diag: a("s_add_u32 s75, s75, 1")
    if not early:
        a(f"s_cmp_lg_u32 s{sCons}, 0\ns_cbranch_scc1 L_red")
        poll(PRS[0])
        a("L_red:")
    a("s_waitcnt lgkmcnt(4)")
    a(f"v_max3_f32 v{RC+2}, v{ML}, v{ML+2}, v{ML+4}\nv_max_f32 v{RC+2}, v{RC+2}, v{ML+6}")
    for w in range(4): a(f"v_sub_f32 v{ML+2*w}, v{ML+2*w}, v{RC+2}")
    for w in range(4): a(f"v_exp_f32 v{ML+2*w}, v{ML+2*w}")
    a(f"s_mov_b32 vcc_lo, 0xaaaaaaaa\ns_mov_b32 vcc_hi, 0xaaaaaaaa")
    a("s_waitcnt lgkmcnt(0)")
    for w in range(4):
        op = "v_mul_f32" if w == 0 else "v_fmac_f32"
        a(f"{op} v{RC+3}, v{ML+2*w}, v{ML+2*w+1}\n{op} v{O0}, v{ML+2*w}, v{RD+2*w}\n{op} v{O1}, v{ML+2*w}, v{RD+2*w+1}")
    a(f"s_cmp_eq_u32 s{sCons}, 0\ns_cbranch_scc1 L_poll0")
    a(f"v_cndmask_b32 v{RC+2}, v{RC+2}, v{RC+3}, vcc\nv_mov_b32 v{RC+3}, s{sTag}")
    a(f"buffer_store_dwordx4 v[{RC}:{RC+3}], v{vL16}, s[{SWS}:{SWS+3}], s{sRec} offen {rst}")
    if diag:
        a("s_waitcnt vmcnt(0)")
        stamp(5)
    a("s_branch L_end")
    QM = "quad_perm:[0,0,2,2] row_mask:0xf bank_mask:0xf"
    QL = "quad_perm:[1,1,3,3] row_mask:0xf bank_mask:0xf"
    def fold(PR, tag):
        fa, fs, m2 = T[4], T[5], T[6]
        for s in range(1, 8):
            r = PR + 4 * s
            a(f"s_waitcnt vmcnt({7 * (nset - 1) + 7 - s})")
            a(f"v_cmp_ne_u32 vcc, s{sTag}, v{r+3}")
            a(f"v_max_f32_dpp v{m2}, v{r+2}, v{RC+2} {QM}")
            a(f"s_cmp_ge_u32 s{SRR+s}, {WS_SZ}\ns_cbranch_scc1 L_sk{tag}{s}")
            a(f"v_sub_f32 v{fa}, v{RC+2}, v{m2}\nv_sub_f32_dpp v{fs}, v{r+2}, v{m2} {QM}")
            a(f"s_cbranch_vccnz L_sk{tag}{s}")
            a(f"v_exp_f32 v{fa}, v{fa}\nv_exp_f32 v{fs}, v{fs}\nv_mov_b32 v{RC+2}, v{m2}")
            a(f"s_mov_b32 s{SRR+s}, {WS_SZ}\ns_sub_u32 s{SRR}, s{SRR}, 1")
            a(f"v_mul_f32 v{O0}, v{O0}, v{fa}\nv_mul_f32 v{O1}, v{O1}, v{fa}\nv_mul_f32 v{RC+3}, v{RC+3}, v{fa}")
            a(f"v_fmac_f32 v{O0}, v{r}, v{fs}\nv_fmac_f32 v{O1}, v{r+1}, v{fs}\nv_fmac_f32_dpp v{RC+3}, v{r+2}, v{fs} {QL}")
            a(f"s_cmp_eq_u32 s{SRR}, 0\ns_cbranch_scc1 L_done")
            a(f"L_sk{tag}{s}:\ns_nop 0")
    a("L_poll0:")
    for k in range(1, nset - 1):
        poll(PRS[k])
        a("s_nop 15\ns_nop 15\ns_nop 15\ns_nop 15" if False else "s_nop 0")
    a("L_ploop:")
    if nset == 1:
        fold(PRS[0], "a")
        poll(PRS[0])
    else:
        for k in range(nset):
            poll(PRS[(k + nset - 1) % nset])
            fold(PRS[k], "abcd"[k])
    a("s_branch L_ploop")
    a("L_done:")
    a(f"v_rcp_f32 v{RC+3}, v{RC+3}")
    a(f"v_mul_f32 v{O0}, v{O0}, v{RC+3}\nv_mul_f32 v{O1}, v{O1}, v{RC+3}")
    a(f"v_cvt_pk_bf16_f32 v{O0}, v{O0}, v{O1}")
    a(f"buffer_store_dword v{O0}, v{vOut}, s[{SOUT}:{SOUT+3}], 0 offen {oflags}")
    a(f"s_cmp_lg_u32 s{sW}, 0\ns_cbranch_scc1 L_end")
    a(f"v_mov_b32 v{T[7]}, s{sTag}\ns_mov_b64 exec, 1")
    a(f"buffer_store_dword v{T[7]}, off, s[{SWS}:{SWS+3}], s{sEp} sc1")
    a("s_mov_b64 exec, -1")
    if diag:
        a("s_waitcnt vmcnt(0)")
        stamp(6)
    a("L_end:")
    if diag:
        a("s_waitcnt vmcnt(0)")
        a(f"s_getreg_b32 s{sD}, hwreg(HW_REG_XCC_ID)")
        a(f"v_writelane_b32 v{vDg}, s{sD}, 15\nv_writelane_b32 v{vDg}, s75, 13")
        a(f"s_lshl_b32 s4, s{sWG}, 2\ns_add_u32 s4, s4, s{sW}\ns_lshl_b32 s4, s4, 6\ns_add_u32 s4, s4, 0x200000")
        a(f"v_lshlrev_b32 v{T[0]}, 2, v{vLane}\ns_mov_b64 exec, 0xffff")
        a(f"buffer_store_dword v{vDg}, v{T[0]}, s[{SWS}:{SWS+3}], s4 offen")
    a("L_exit:\ns_endpgm")
    body = a.finish()
    nv = (NV + 7) // 8 * 8
    txt = HDR + """; Flash-decoding over 256 workgroups x 4 waves: workgroup = (b, kv head, one of 8 slices of 1024 tokens).
; Generated by a script of my own (register plan, software pipeline and wait states are spelled out there).
""" + f"""; @launch grid=(256,1,1) block=({NW*64},1,1) lds={LDS_SZ}
.amdgcn_target "amdgcn-amd-amdhsa--gfx950"
.text
.globl {KN}
.p2align 8
.type {KN},@function
{KN}:
{body}
.section .rodata,"a"
.p2align 6
.amdhsa_kernel {KN}
  .amdhsa_next_free_vgpr {nv}
  .amdhsa_next_free_sgpr {NSGPR}
  .amdhsa_accum_offset {nv}
  .amdhsa_group_segment_fixed_size 0
  .amdhsa_kernarg_size 80
  .amdhsa_user_sgpr_count 2
  .amdhsa_user_sgpr_kernarg_segment_ptr 1
  .amdhsa_system_sgpr_workgroup_id_x 1
  .amdhsa_float_denorm_mode_32 3
.end_amdhsa_kernel
"""
    return txt, len(a.ins), a.nops

if __name__ == "__main__":
    sys.path.insert(0, "bench")
    from build import build
    kw = eval("dict(" + (sys.argv[2] if len(sys.argv) > 2 else "") + ")")
    txt, n, nops = gen(**kw)
    p = f"bench/{sys.argv[1]}.s"
    open(p, "w").write(txt)
    print("instrs", n, "nop states", nops)
    print(build(p))
```
